```python
import torch

def _softmax(x, axis=-1):
    return torch.softmax(x, dim=axis)
def _gelu(x):
    return torch.nn.functional.gelu(x, approximate="tanh")
def _silu(x):
    return torch.nn.functional.silu(x)
def _sigmoid(x):
    return torch.sigmoid(x)
def _layernorm(x, axis=-1, eps=1e-5):
    m = x.mean(dim=axis, keepdim=True)
    v = x.var(dim=axis, keepdim=True, unbiased=False)
    return (x - m) / torch.sqrt(v + eps)
def _scatter_add(tgt, idx, src, axis=0):
    return tgt.clone().index_add_(axis, idx, src)
def _segment_sum(src, seg, n):
    out = torch.zeros((n,) + src.shape[1:], dtype=src.dtype)
    return out.index_add_(0, seg, src)
def _pad(x, pw):
    flat = tuple(v for pair in reversed(pw) for v in pair)
    return torch.nn.functional.pad(x, flat)

kernel_name = 'standalone__linear_kernel_rfa__sampling'

def setup_inputs():

    _w = (lambda a: (lambda t: t.to(torch.bfloat16) if t.is_floating_point() else t)(torch.as_tensor(a)))
    B, H, Sq, Sk, D, M = 16, 32, 8, 2048, 128, 16
    return {
        "q": _w((lambda *s: torch.randn(*s, dtype=torch.bfloat16) * 0.2)(B, H, Sq, D)),
        "k": _w((lambda *s: torch.randn(*s, dtype=torch.bfloat16) * 1.6)(B, H, Sk, D)),
        "v": _w((lambda *s: torch.randn(*s, dtype=torch.bfloat16) * 1.6)(B, H, Sk, D)),
        "omega": _w((lambda *s: torch.randn(*s, dtype=torch.bfloat16) * 1.6)(M, D)),
    }

def reference(q, k, v, omega):
    d = q.shape[-1]
    m = omega.shape[0]
    scale = float(d) ** -0.25
    qs = q * scale
    ks = k * scale
    q_proj = torch.einsum("bhsd,md->bhsm", qs, omega)
    k_proj = torch.einsum("bhsd,md->bhsm", ks, omega)
    q_sq = 0.5 * torch.einsum("bhsd,bhsd->bhs", qs, qs)[..., None]
    k_sq = 0.5 * torch.einsum("bhsd,bhsd->bhs", ks, ks)[..., None]
    inv_sqrt_m = float(m) ** -0.5
    phi_q = torch.exp(q_proj - q_sq) * inv_sqrt_m + 1e-6
    phi_k = torch.exp(k_proj - k_sq) * inv_sqrt_m + 1e-6
    kv = torch.einsum("bhsm,bhsd->bhmd", phi_k, v)
    z  = torch.einsum("bhsm->bhm", phi_k)
    num = torch.einsum("bhqm,bhmd->bhqd", phi_q, kv)
    den = torch.einsum("bhqm,bhm->bhq", phi_q, z)[..., None] + 1e-6
    return num / den
```

```python
import sys, math, struct

KNAME = "standalone__linear_kernel_rfa__sampling_kernel"
HEADER = """; Kernarg layout for this problem (56 bytes, ptrs only, base s[0:1]):
"""

def f2u(x): return struct.unpack('<I', struct.pack('<f', x))[0]
SCALE = 128.0 ** -0.25
C1 = SCALE * math.log2(math.e)
CB = -0.5 * SCALE

def gen(path, NS=2, D=8, WPH=2, flag="nt", ts=False, force_vgpr=512, lds_min=0, epi="f32"):
    NWG = 512
    NT = 64 // WPH
    L = []
    A = L.append
    def vr(b, n=4): return f"v[{b}:{b+n-1}]"
    V_LANE, V_KOFF, V_VOFF, V_TMP = 0, 1, 2, 3
    W = 4
    ONES = 20
    CBV = 24
    PA, PB = 25, 26
    V_T2 = 27
    D1A, D1B = 28, 32
    X = 36
    A2 = 40
    B0, B1 = 44, 48
    PHQ = 52
    ACC = 56
    ZACC = 88
    SET0 = 92
    def KR(s, T): return SET0 + 64*s + 16*T
    def VR(s, j): return SET0 + 64*s + 32 + 4*j
    nv = SET0 + 64*NS
    assert nv <= 256
    fl = (" " + flag) if flag else ""
    own = 8 // WPH
    lds_bytes = max(WPH * 9 * 1024, lds_min)

    A(HEADER.rstrip())
    A(f"; @launch grid=({NWG},1,1) block=({64*WPH},1,1) lds={lds_bytes}")
    A('.amdgcn_target "amdgcn-amd-amdhsa--gfx950"')
    A(".text")
    A(f".globl {KNAME}\n.p2align 8\n.type {KNAME},@function\n{KNAME}:")
    A(f"  s_cmp_ge_u32 s2, {NWG}")
    A("  s_cbranch_scc1 L_end")
    A("  s_load_dwordx8 s[4:11], s[0:1], 0")
    A("  s_load_dwordx2 s[12:13], s[0:1], 32")
    if ts:
        A("  s_load_dwordx2 s[14:15], s[0:1], 48")
        A("  s_memrealtime s[60:61]")
    A(f"  v_lshrrev_b32 v{V_TMP}, 6, v0")
    A(f"  v_and_b32 v{V_LANE}, 63, v0")
    A(f"  v_readfirstlane_b32 s3, v{V_TMP}")
    A(f"  v_and_b32 v{V_KOFF}, 3, v{V_LANE}")
    A(f"  v_lshlrev_b32 v{V_KOFF}, 10, v{V_KOFF}")
    A(f"  v_bfe_u32 v{V_TMP}, v{V_LANE}, 2, 2")
    A(f"  v_lshl_add_u32 v{V_KOFF}, v{V_TMP}, 8, v{V_KOFF}")
    A(f"  v_lshrrev_b32 v{V_T2}, 4, v{V_LANE}")
    A(f"  v_lshl_add_u32 v{V_KOFF}, v{V_T2}, 4, v{V_KOFF}")
    A(f"  v_lshlrev_b32 v{V_VOFF}, 4, v{V_LANE}")
    A(f"  v_and_b32 v{V_TMP}, 15, v{V_LANE}")
    A(f"  v_lshlrev_b32 v{V_TMP}, 8, v{V_TMP}")
    A(f"  v_lshl_add_u32 v{V_TMP}, v{V_T2}, 4, v{V_TMP}")
    A("  s_lshl_b32 s36, s2, 19")
    A("  s_lshl_b32 s37, s2, 11")
    A(f"  s_lshl_b32 s38, s3, 13")
    A("  s_mov_b32 s18, 0x80000")
    A("  s_mov_b32 s19, 0x20000")
    A("  s_mov_b32 s22, 0x80000")
    A("  s_mov_b32 s23, 0x20000")
    A("  s_mov_b32 s26, 0x800")
    A("  s_mov_b32 s27, 0x20000")
    A("  s_mov_b32 s30, 0x1000")
    A("  s_mov_b32 s31, 0x20000")
    A("  s_waitcnt lgkmcnt(0)")
    A("  s_add_u32 s16, s6, s36"); A("  s_addc_u32 s17, s7, 0")
    A("  s_add_u32 s20, s8, s36"); A("  s_addc_u32 s21, s9, 0")
    A("  s_mov_b32 s28, s10"); A("  s_mov_b32 s29, s11")
    A("  s_add_u32 s24, s4, s37"); A("  s_addc_u32 s25, s5, 0")
    QR = VR(0, 0) if False else SET0 + 64*NS - 0
    QF = ACC
    for t in range(4):
        A(f"  buffer_load_dwordx4 {vr(W+4*t)}, v{V_TMP}, s[28:31], 0 offen offset:{64*t}")
    for t in range(4):
        A(f"  buffer_load_dwordx4 {vr(QF+4*t)}, v{V_TMP}, s[24:27], 0 offen offset:{64*t}")
    nissued = [8]
    group_end = {}
    TSTEP = 8192 * WPH
    state = {"base": 0}
    def issue(n):
        i, part = divmod(n, 4)
        if i >= NT: return
        s = i % NS
        off = (i - state["base"]) * TSTEP + (part & 1) * 4096
        so = "s38"
        if off:
            A(f"  s_add_u32 s39, s38, {off}"); so = "s39"
        if part < 2:
            for t in range(4):
                A(f"  buffer_load_dwordx4 {vr(KR(s, part)+4*t)}, v{V_KOFF}, s[16:19], {so} offen offset:{64*t}{fl}")
        else:
            for j in range(4):
                A(f"  buffer_load_dwordx4 {vr(VR(s, 4*(part-2)+j))}, v{V_VOFF}, s[20:23], {so} offen offset:{1024*j}{fl}")
        nissued[0] += 4
        group_end[n] = nissued[0]
    def wait(n):
        c = nissued[0] - group_end[n]
        assert c <= 63
        A(f"  s_waitcnt vmcnt({c})")
    for n in range(D):
        issue(n)
    A(f"  s_mov_b32 s40, {hex(f2u(C1))}")
    A(f"  s_mov_b32 s41, 0x05040100")
    A(f"  s_mov_b32 s42, 0x07060302")
    A(f"  v_mov_b32 v{CBV}, {hex(f2u(CB))}")
    for r in range(4): A(f"  v_mov_b32 v{ONES+r}, 0x3f803f80")
    A("  s_add_u32 s32, s12, s37"); A("  s_addc_u32 s33, s13, 0"); A("  s_mov_b32 s34, 0x800"); A("  s_mov_b32 s35, 0x20000")
    A(f"  s_waitcnt vmcnt({nissued[0]-8})")
    A(f"  v_mfma_f32_16x16x32_bf16 {vr(D1A)}, {vr(W)}, {vr(QF)}, 0")
    for t in range(4):
        if t:
            A(f"  v_mfma_f32_16x16x32_bf16 {vr(D1A)}, {vr(W+4*t)}, {vr(QF+4*t)}, {vr(D1A)}")
        for k in range(4):
            p = PA if k % 2 == 0 else PB
            src = QF + 4*t + k
            c = "0" if (t == 0 and k < 2) else f"v{p}"
            A(f"  v_dot2_f32_bf16 v{p}, v{src}, v{src}, {c}")
    A("  s_nop 2")
    A(f"  v_add_f32 v{PA}, v{PA}, v{PB}")
    A("  s_nop 1")
    A(f"  v_mfma_f32_16x16x4_f32 {vr(D1A)}, v{CBV}, v{PA}, {vr(D1A)}")
    for r in range(36): A(f"  v_mov_b32 v{ACC+r}, 0")
    for r in range(4): A(f"  v_fma_f32 v{PHQ+r}, v{D1A+r}, s40, -2.0")
    for r in range(4): A(f"  v_exp_f32 v{PHQ+r}, v{PHQ+r}")
    for r in range(4): A(f"  v_add_f32 v{PHQ+r}, 0x358637bd, v{PHQ+r}")

    def ktile(s, T, Dr):
        kr = KR(s, T)
        for t in range(4):
            c = "0" if t == 0 else vr(Dr)
            A(f"  v_mfma_f32_16x16x32_bf16 {vr(Dr)}, {vr(kr+4*t)}, {vr(W+4*t)}, {c}")
            for k in range(4):
                p = PA if k % 2 == 0 else PB
                src = kr + 4*t + k
                cc = "0" if (t == 0 and k < 2) else f"v{p}"
                A(f"  v_dot2_f32_bf16 v{p}, v{src}, v{src}, {cc}")
    def ksq(Dr):
        A(f"  v_add_f32 v{PA}, v{PA}, v{PB}")
        A("  s_nop 1")
        A(f"  v_mfma_f32_16x16x4_f32 {vr(Dr)}, v{PA}, v{CBV}, {vr(Dr)}")
    def phi(Dr, T):
        for r in range(4): A(f"  v_fma_f32 v{X+r}, v{Dr+r}, s40, -2.0")
        for r in range(4): A(f"  v_exp_f32 v{X+r}, v{X+r}")
        for r in range(4): A(f"  v_add_f32 v{X+r}, 0x358637bd, v{X+r}")
        A(f"  v_cvt_pk_bf16_f32 v{A2+2*T}, v{X}, v{X+1}")
        A(f"  v_cvt_pk_bf16_f32 v{A2+2*T+1}, v{X+2}, v{X+3}")
    def perms(s, e, B):
        sel = "s41" if e % 2 == 0 else "s42"
        for p in range(4):
            A(f"  v_perm_b32 v{B+p}, v{VR(s, 2*p+1)+e//2}, v{VR(s, 2*p)+e//2}, {sel}")
    def tile(i):
        s = i % NS
        n0 = 4*i
        wait(n0)
        ktile(s, 0, D1A)
        k = len(L); issue(n0 + D)
        if len(L) - k < 3: A("  s_nop 2")
        ksq(D1A)
        wait(n0+1)
        ktile(s, 1, D1B)
        k = len(L); issue(n0 + 1 + D)
        if len(L) - k < 3: A("  s_nop 2")
        ksq(D1B)
        phi(D1A, 0)
        phi(D1B, 1)
        wait(n0+3)
        perms(s, 0, B0); perms(s, 1, B1)
        for e in range(8):
            B = B0 if e % 2 == 0 else B1
            A(f"  v_mfma_f32_16x16x32_bf16 {vr(ACC+4*e)}, {vr(A2)}, {vr(B)}, {vr(ACC+4*e)}")
            if e + 2 < 8: perms(s, e+2, B)
        A(f"  v_mfma_f32_16x16x32_bf16 {vr(ZACC)}, {vr(A2)}, {vr(ONES)}, {vr(ZACC)}")
        issue(n0 + 2 + D); issue(n0 + 3 + D)

    last_full = (4*NT - 1 - D - 3) // 4
    nloop = (last_full + 1) // NS
    if nloop >= 1:
        A(f"  s_mov_b32 s43, {nloop}")
        A("L_loop:")
        snapshot = (nissued[0], dict(group_end))
        for u in range(NS):
            tile(u)
        A(f"  s_add_u32 s38, s38, {NS*TSTEP}")
        A("  s_sub_u32 s43, s43, 1")
        A("  s_cmp_lg_u32 s43, 0")
        A("  s_cbranch_scc1 L_loop")
        keep = len(L)
        for it in range(1, nloop):
            state["base"] = it*NS
            for u in range(NS): tile(it*NS + u)
        del L[keep:]
        state["base"] = nloop*NS
    for i in range(nloop*NS, NT):
        tile(i)
    A("  s_nop 7")
    A(f"  s_mul_i32 s44, s3, {9*1024}")
    A(f"  v_add_u32 v{V_TMP}, s44, v{V_VOFF}")
    for e in range(9):
        A(f"  ds_write_b128 v{V_TMP}, {vr(ACC+4*e)} offset:{1024*e}")
    A(f"  s_mul_i32 s44, s3, {own*1024}")
    A(f"  v_add_u32 v{V_TMP}, s44, v{V_VOFF}")
    A("  s_waitcnt lgkmcnt(0)")
    A("  s_barrier")
    RB = SET0
    for w in range(WPH):
        for k in range(own):
            A(f"  ds_read_b128 {vr(RB + 4*(w*(own+1)+k))}, v{V_TMP} offset:{w*9216 + 1024*k}")
        A(f"  ds_read_b128 {vr(RB + 4*(w*(own+1)+own))}, v{V_VOFF} offset:{w*9216 + 8192}")
    A("  s_waitcnt lgkmcnt(0)")
    for w in range(1, WPH):
        for r in range(4*(own+1)):
            A(f"  v_add_f32 v{RB+r}, v{RB+r}, v{RB + 4*w*(own+1) + r}")
    A("  s_nop 1")
    for r in range(4):
        for k in range(own+1):
            c = "0" if r == 0 else vr(ACC+4*k)
            A(f"  v_mfma_f32_16x16x4_f32 {vr(ACC+4*k)}, v{PHQ+r}, v{RB+4*k+r}, {c}")
    A("  s_nop 7"); A("  s_nop 3")
    DEN = ACC + 4*own
    for r in range(4): A(f"  v_add_f32 v{DEN+r}, 0x358637bd, v{DEN+r}")
    for r in range(4): A(f"  v_rcp_f32 v{DEN+r}, v{DEN+r}")
    A("  s_nop 0")
    for k in range(own):
        for r in range(4):
            A(f"  v_mul_f32 v{ACC+4*k+r}, v{ACC+4*k+r}, v{DEN+r}")
    OUT = X
    OUT = B0
    for r in range(4):
        for k in range(0, own, 2):
            A(f"  v_cvt_pk_bf16_f32 v{OUT + r*(own//2) + k//2}, v{ACC+4*k+r}, v{ACC+4*(k+1)+r}")
    A(f"  v_lshrrev_b32 v{V_TMP}, 4, v{V_LANE}")
    A(f"  v_lshlrev_b32 v{V_TMP}, 10, v{V_TMP}")
    A(f"  v_and_b32 v{V_T2}, 15, v{V_LANE}")
    A(f"  v_lshl_add_u32 v{V_TMP}, v{V_T2}, 4, v{V_TMP}")
    A(f"  s_mul_i32 s44, s3, {own*2}")
    A(f"  v_add_u32 v{V_TMP}, s44, v{V_TMP}")
    for r in range(4):
        if own == 4:
            A(f"  buffer_store_dwordx2 {vr(OUT+2*r, 2)}, v{V_TMP}, s[32:35], 0 offen offset:{256*r}")
        else:
            A(f"  buffer_store_dword v{OUT+r}, v{V_TMP}, s[32:35], 0 offen offset:{256*r}")
    if ts:
        A("  s_waitcnt vmcnt(0)")
        A("  s_barrier")
        A("  s_memrealtime s[62:63]")
        A("  s_getreg_b32 s64, hwreg(HW_REG_XCC_ID)")
        A("  s_waitcnt lgkmcnt(0)")
        A("  s_cmp_lg_u32 s3, 0"); A("  s_cbranch_scc1 L_end")
        A("  v_mov_b32 v10, s60"); A("  v_mov_b32 v11, s61"); A("  v_mov_b32 v12, s62"); A("  v_mov_b32 v13, s63")
        A("  v_mov_b32 v14, s64"); A("  v_mov_b32 v15, 0")
        A("  s_lshl_b32 s3, s2, 5"); A("  v_mov_b32 v9, s3")
        A("  v_cmp_eq_u32 vcc, 0, v0"); A("  s_and_saveexec_b64 s[46:47], vcc"); A("  s_cbranch_execz L_end")
        A("  global_store_dwordx4 v9, v[10:13], s[14:15]")
        A("  global_store_dwordx2 v9, v[14:15], s[14:15] offset:16")
    A("L_end:\n  s_endpgm")
    nvv = max(force_vgpr, nv)
    acc = min(256, (nvv+3)//4*4)
    A(f""".section .rodata,"a"
.p2align 6
.amdhsa_kernel {KNAME}
  .amdhsa_next_free_vgpr {nvv}
  .amdhsa_next_free_sgpr 72
  .amdhsa_accum_offset {acc}
  .amdhsa_group_segment_fixed_size 0
  .amdhsa_kernarg_size 56
  .amdhsa_user_sgpr_count 2
  .amdhsa_user_sgpr_kernarg_segment_ptr 1
  .amdhsa_system_sgpr_workgroup_id_x 1
.end_amdhsa_kernel""")
    open(path, "w").write("\n".join(L) + "\n")

if __name__ == "__main__":
    gen("k1_ts.s", ts=True)
    gen("k1.s")
```

```python
import re
def regs(tok):
    tok = tok.strip()
    m = re.fullmatch(r"v\[(\d+):(\d+)\]", tok)
    if m: return set(range(int(m.group(1)), int(m.group(2))+1))
    m = re.fullmatch(r"v(\d+)", tok)
    if m: return {int(m.group(1))}
    return set()
def classify(line):
    s = line.strip()
    if not s or s.startswith(";") or s.endswith(":") or s.startswith("."): return None
    op = s.split()[0]
    rest = s[len(op):].split(";")[0]
    ops = [x.strip() for x in rest.split(",")]
    ops = [x.split()[0] if x else x for x in ops]
    d = dict(op=op, w=set(), r=set(), cls="other", c=set())
    if op.startswith("v_mfma"):
        d["cls"] = "sgemm" if op.endswith("_f32") and "bf16" not in op else "xdl"
        d["w"] = regs(ops[0]); d["ab"] = regs(ops[1]) | regs(ops[2]); d["c"] = regs(ops[3]); d["r"] = d["ab"] | d["c"]
    elif op.startswith("v_dot2"):
        d["cls"] = "dot"; d["w"] = regs(ops[0]); d["ab"] = regs(ops[1]) | regs(ops[2]); d["c"] = regs(ops[3]); d["r"] = d["ab"] | d["c"]
    elif op.startswith("v_cmp") or op.startswith("v_readfirstlane"):
        d["cls"] = "valu"; d["r"] = set().union(*[regs(x) for x in ops[1:]])
    elif op.startswith("v_"):
        d["cls"] = "trans" if op in ("v_exp_f32", "v_rcp_f32", "v_log_f32", "v_rsq_f32", "v_sqrt_f32") else "valu"
        d["w"] = regs(ops[0]); d["r"] = set().union(*[regs(x) for x in ops[1:]]) if len(ops) > 1 else set()
    elif op.startswith("ds_read"):
        d["cls"] = "mem"; d["w"] = regs(ops[0]); d["r"] = regs(ops[1])
    elif op.startswith("ds_write") or op.startswith("ds_add"):
        d["cls"] = "mem"; d["r"] = set().union(*[regs(x) for x in ops])
    elif op.startswith("buffer_load") or op.startswith("global_load"):
        d["cls"] = "mem"
        if " lds" in s: d["r"] = regs(ops[0])
        else: d["w"] = regs(ops[0]); d["r"] = regs(ops[1])
    elif op.startswith("buffer_store") or op.startswith("global_store"):
        d["cls"] = "mem"; d["r"] = set().union(*[regs(x) for x in ops[:2]]); d["store"] = True
    elif op == "s_nop":
        d["cls"] = "nop"; d["n"] = int(ops[0], 0) + 1
    return d
def need(p, c):
    n = 0
    pw, cr, cw = p["w"], c["r"], c["w"]
    pc, cc = p["cls"], c["cls"]
    mf = cc in ("xdl", "sgemm")
    if pc in ("valu", "trans"):
        if mf and pw & cr: n = max(n, 2)
        if pc == "trans" and cc in ("valu", "dot") and pw & cr: n = max(n, 1)
        if c["op"].startswith("v_readfirstlane") and pw & cr: n = max(n, 1)
    if pc == "dot":
        if pw & (cr | cw):
            if cc == "dot" and c["op"] == p["op"] and not (pw & c["ab"]): n = max(n, 0)
            else: n = max(n, 3)
    if pc == "xdl":
        if cc == "xdl":
            if pw & c["ab"]: n = max(n, 8)
            if pw & c["c"]: n = max(n, 0 if pw == c["c"] else 6)
        elif cc == "sgemm":
            if pw & c["ab"]: n = max(n, 8)
            if pw & c["c"]: n = max(n, 6)
        elif cc in ("valu", "trans", "dot", "mem"):
            if pw & (cr | cw): n = max(n, 8)
        if cc in ("valu", "trans", "dot") and p["c"] & cw: n = max(n, 3)
    if pc == "sgemm":
        if cc == "sgemm":
            if pw & c["ab"]: n = max(n, 10)
            if pw & c["c"]: n = max(n, 0 if pw == c["c"] else 8)
        elif cc == "xdl":
            if pw & c["ab"]: n = max(n, 10)
        elif cc in ("valu", "trans", "dot", "mem"):
            if pw & (cr | cw): n = max(n, 10)
    if pc == "mem" and p.get("store") and p["op"].endswith(("x3", "x4")) and cc in ("valu", "trans", "dot") and p["r"] & cw: n = max(n, 2)
    return n
def fix(lines, verbose=False):
    out = []; hist = []
    pos = 0; ins = 0
    for ln in lines:
        d = classify(ln)
        if d is None: out.append(ln); continue
        if d["cls"] == "nop":
            out.append(ln); pos += d["n"]; continue
        req = 0
        for (p, pp) in hist[-24:]:
            k = need(p, d)
            if k: req = max(req, k - (pos - pp - 1))
        while req > 0:
            n = min(req, 8)
            out.append(f"  s_nop {n-1}"); pos += n; req -= n; ins += n
        out.append(ln)
        if d["cls"] != "other": hist.append((d, pos))
        pos += 1
    if verbose: print("inserted wait states:", ins)
    return out
def check(lines):
    bad = []; hist = []; pos = 0
    for ln in lines:
        d = classify(ln)
        if d is None: continue
        if d["cls"] == "nop": pos += d["n"]; continue
        for (p, pp, pl) in hist[-24:]:
            k = need(p, d)
            if k and pos - pp - 1 < k: bad.append((pl, ln, k, pos - pp - 1))
        if d["cls"] != "other": hist.append((d, pos, ln))
        pos += 1
    return bad
```

```python
import sys, math, struct, re
from gen import KNAME, HEADER, f2u, SCALE, C1, CB
import haz

def gen4(path, W=5, flag="nt", ts=0, W0=None, J0=0, Wt=None, J1=512, prio=3, stflag="", Wpat=None, cprio=0, sleep=0):
    NWG = 256; NPAIR = 32
    L = []; A = L.append
    def vr(b, n=4): return f"v[{b}:{b+n-1}]"
    fl = (" " + flag) if flag else ""
    FLAGS = 131072
    lds_bytes = FLAGS + 64
    A(HEADER.rstrip())
    A(f"; @launch grid=({NWG},1,1) block=(512,1,1) lds={lds_bytes}")
    A('.amdgcn_target "amdgcn-amd-amdhsa--gfx950"')
    A(".text")
    A(f".globl {KNAME}\n.p2align 8\n.type {KNAME},@function\n{KNAME}:")
    A(f"  s_cmp_ge_u32 s2, {NWG}")
    A("  s_cbranch_scc1 L_end")
    A("  s_load_dwordx8 s[4:11], s[0:1], 0")
    A("  s_load_dwordx2 s[12:13], s[0:1], 32")
    def stamp(k):
        if ts == 2: A(f"  s_memrealtime s[{66+2*k}:{67+2*k}]")
    if ts:
        A("  s_load_dwordx2 s[14:15], s[0:1], 48")
        A("  s_memrealtime s[60:61]")
    V_LANE, V_VOFF, V_TMP, V_T2 = 0, 1, 2, 3
    A(f"  v_lshrrev_b32 v{V_TMP}, 6, v0")
    A(f"  v_and_b32 v{V_LANE}, 63, v0")
    A(f"  v_readfirstlane_b32 s3, v{V_TMP}")
    A(f"  v_lshlrev_b32 v{V_VOFF}, 4, v{V_LANE}")
    A(f"  v_lshrrev_b32 v{V_T2}, 4, v{V_LANE}")
    A(f"  v_and_b32 v{V_TMP}, 15, v{V_LANE}")
    A("  s_and_b32 s50, s3, 3")
    A("  s_lshl_b32 s51, s50, 15")
    A("  s_lshl_b32 s52, s50, 4"); A(f"  s_add_u32 s52, s52, {FLAGS}")
    A("  s_cmp_ge_u32 s3, 4")
    A("  s_cbranch_scc1 L_consumer")
    V_KD = 4; V_FL = 8; V_FULL = 9; V_FREE = 10; PA, PB = 11, 12
    S_WOFF = 38; S_AD = (39, 40); S_N = 41; S_T = 48; S_U = 49; S_IT = 47; S_NEED = 44; S_F = 45
    if prio: A(f"  s_setprio {prio}")
    A(f"  v_lshlrev_b32 v{PA}, 2, v{V_T2}")
    A(f"  v_xor_b32 v{PA}, v{PA}, v{V_TMP}")
    for j in range(4):
        A(f"  v_xor_b32 v{PB}, {j}, v{PA}")
        A(f"  v_lshlrev_b32 v{PB}, 4, v{PB}")
        A(f"  v_lshl_add_u32 v{V_KD+j}, v{V_T2}, 8, v{PB}")
    A(f"  s_lshl_b32 s36, s2, 20")
    A(f"  s_lshl_b32 s{S_WOFF}, s50, 12")
    A("  s_mov_b32 s18, 0x100000"); A("  s_mov_b32 s19, 0x20000")
    A("  s_mov_b32 s22, 0x100000"); A("  s_mov_b32 s23, 0x20000")
    A(f"  s_mov_b32 s{S_N}, 0")
    A(f"  v_mov_b32 v{V_FL}, s52")
    A(f"  v_mov_b32 v{V_FULL}, 0")
    A(f"  v_mov_b32 v{V_FREE}, 0")
    A(f"  ds_write_b64 v{V_FL}, v[{V_FULL+1}:{V_FULL+2}]".replace(f"v[{V_FULL+1}:{V_FULL+2}]", f"v[{V_FULL}:{V_FULL+1}]") if False else f"  ds_write_b32 v{V_FL}, v{V_FULL}")
    A(f"  ds_write_b32 v{V_FL}, v{V_FREE} offset:4")
    A("  s_waitcnt lgkmcnt(0)")
    A("  s_add_u32 s16, s6, s36"); A("  s_addc_u32 s17, s7, 0")
    A("  s_add_u32 s20, s8, s36"); A("  s_addc_u32 s21, s9, 0")
    issued = []
    st = dict(comp=-1)
    def wfun(j):
        if W0 is not None and j < J0: return W0
        if Wt is not None and j >= J1: return Wt
        return W if Wpat is None else Wpat[j % len(Wpat)]
    def addr_code(n):
        s = S_AD[n & 1]
        return [f"  s_and_b32 s{S_T}, s{S_N}, 15", f"  s_lshl_b32 s{S_T}, s{S_T}, 15",
                f"  s_and_b32 s{S_U}, s{S_N}, 16", f"  s_lshl_b32 s{S_U}, s{S_U}, 10", f"  s_or_b32 s{S_T}, s{S_T}, s{S_U}",
                f"  s_and_b32 s{S_U}, s{S_N}, 32", f"  s_lshl_b32 s{S_U}, s{S_U}, 14", f"  s_or_b32 s{S_T}, s{S_T}, s{S_U}",
                f"  s_or_b32 s{s}, s{S_T}, s{S_WOFF}", f"  s_add_u32 s{S_N}, s{S_N}, 1"]
    lab = [0]
    def lslot(j, inloop):
        o = []
        g, r = divmod(j, 4); n, isv = divmod(g, 2)
        pre = []
        if r == 0:
            pre += [f"  s_add_u32 m0, s51, {(g % 8) * 4096}"]
            if not isv: pre += addr_code(n)
            else: pre += ["  s_nop 0"]
            if g % 4 == 0 and g >= 8:
                lab[0] += 1; k = lab[0]
                pre += ["  s_waitcnt lgkmcnt(0)", f"  v_readfirstlane_b32 s{S_F}, v{V_FREE}", f"  s_add_u32 s{S_NEED}, s{S_NEED}, 1",
                        f"LL_chk{k}:", f"  s_cmp_ge_u32 s{S_F}, s{S_NEED}", f"  s_cbranch_scc1 LL_ok{k}",
                        f"  ds_read_b32 v{V_FREE}, v{V_FL} offset:4", "  s_waitcnt lgkmcnt(0)", f"  v_readfirstlane_b32 s{S_F}, v{V_FREE}", f"  s_branch LL_chk{k}",
                        f"LL_ok{k}:"]
        o += pre
        w = wfun(j)
        pub = []
        if j - w > st["comp"]:
            c = len(issued) - 1 - issued.index(j - w)
            o.append(f"  s_waitcnt vmcnt({c})")
            old = st["comp"]; st["comp"] = j - w
            ng_old = (old + 1) // 4; ng = (st["comp"] + 1) // 4
            if ng > ng_old:
                pub = [f"  v_add_u32 v{V_FULL}, {ng - ng_old}, v{V_FULL}", f"  ds_write_b32 v{V_FL}, v{V_FULL}"]
        s = S_AD[n & 1]
        if not isv: o.append(f"  buffer_load_dwordx4 v{V_KD+r}, s[16:19], s{s} offen offset:{1024*r}{fl} lds")
        else: o.append(f"  buffer_load_dwordx4 v{V_VOFF}, s[20:23], s{s} offen offset:{1024*r}{fl} lds")
        issued.append(j)
        o += pub
        if j % 16 == 13: o.append(f"  ds_read_b32 v{V_FREE}, v{V_FL} offset:4")
        return o
    A(f"  s_mov_b32 s{S_NEED}, 0")
    first = True
    for j in range(32):
        L.extend(lslot(j, False))
        if j == min(wfun(0), 15) - 1 - 0 and first:
            first = False
            A("  s_waitcnt lgkmcnt(0)")
            A("  s_barrier")
    A(f"  s_mov_b32 s{S_IT}, 1")
    A("LL_loop:")
    bodies = []
    ntail = 0 if Wt is None else 1
    for it in range(1, 16 - ntail):
        lab[0] = 100
        b = []
        for j in range(32*it, 32*it + 32): b += lslot(j, True)
        bodies.append(b)
    for b in bodies[1:]: assert b == bodies[0], "loader loop not periodic"
    L.extend(bodies[0])
    A(f"  s_add_u32 s{S_IT}, s{S_IT}, 1"); A(f"  s_cmp_lg_u32 s{S_IT}, {16 - ntail}"); A("  s_cbranch_scc1 LL_loop")
    lab[0] = 200
    for j in range(32*(16 - ntail), 512): L.extend(lslot(j, False))
    while st["comp"] < 511:
        nxt = min(511, (st["comp"] + 1) // 4 * 4 + 3)
        c = len(issued) - 1 - issued.index(nxt)
        A(f"  s_waitcnt vmcnt({c})")
        A(f"  v_add_u32 v{V_FULL}, 1, v{V_FULL}"); A(f"  ds_write_b32 v{V_FL}, v{V_FULL}")
        st["comp"] = nxt
    A("  s_waitcnt lgkmcnt(0)")
    A("  s_barrier")
    A("  s_endpgm")
    A("L_consumer:")
    V_KR = 4
    V_VL = 8; V_FL = 9; V_P = 10; V_FREE = 11
    CBV = 13; PA, PB = 14, 15
    Wf = 16; ONES = 32; D1A, D1B = 36, 40; X = 44; A2 = 48; B0, B1 = 52, 56; PHQ = 60
    ACC = 64; ZACC = 96; ACCA = 100
    KF0 = 136; KF1 = 152; VR0 = 168
    QF = 200; DQ = 216
    nv = 220
    S_C1 = 44; S_LO = 45; S_HI = 46; S_IT = 47; S_NEED = 48; S_P = 49
    if cprio: A(f"  s_setprio {cprio}")
    A(f"  s_lshl_b32 s37, s2, 12")
    A("  s_mov_b32 s26, 0x1000"); A("  s_mov_b32 s27, 0x20000")
    A("  s_mov_b32 s30, 0x1000"); A("  s_mov_b32 s31, 0x20000")
    A(f"  v_lshlrev_b32 v{V_P}, 8, v{V_TMP}")
    A(f"  v_lshl_add_u32 v{V_P}, v{V_T2}, 4, v{V_P}")
    A("  s_waitcnt lgkmcnt(0)")
    A("  s_mov_b32 s28, s10"); A("  s_mov_b32 s29, s11")
    A("  s_add_u32 s24, s4, s37"); A("  s_addc_u32 s25, s5, 0")
    for t in range(4): A(f"  buffer_load_dwordx4 {vr(Wf+4*t)}, v{V_P}, s[28:31], 0 offen offset:{64*t}")
    for t in range(4): A(f"  buffer_load_dwordx4 {vr(QF+4*t)}, v{V_P}, s[24:27], 0 offen offset:{64*t}")
    A(f"  v_and_b32 v{PA}, 3, v{V_TMP}"); A(f"  v_lshlrev_b32 v{PA}, 10, v{PA}"); A(f"  v_lshrrev_b32 v{PB}, 2, v{V_TMP}")
    A(f"  v_lshl_add_u32 v{PA}, v{PB}, 8, v{PA}"); A(f"  v_add_u32 v{PA}, s51, v{PA}"); A(f"  v_xor_b32 v{PB}, v{V_T2}, v{V_TMP}")
    for t in range(4):
        A(f"  v_xor_b32 v{X}, {4*t}, v{PB}"); A(f"  v_lshl_add_u32 v{V_KR+t}, v{X}, 4, v{PA}")
    A(f"  v_add_u32 v{V_VL}, s51, v{V_VOFF}")
    A(f"  v_mov_b32 v{V_FL}, s52")
    A(f"  v_mov_b32 v{V_FREE}, 0")
    A(f"  s_mov_b32 s{S_C1}, {hex(f2u(C1))}"); A(f"  s_mov_b32 s{S_LO}, 0x05040100"); A(f"  s_mov_b32 s{S_HI}, 0x07060302")
    A(f"  v_mov_b32 v{CBV}, {hex(f2u(CB))}")
    for r in range(4): A(f"  v_mov_b32 v{ONES+r}, 0x3f803f80")
    A("  s_add_u32 s32, s12, s37"); A("  s_addc_u32 s33, s13, 0"); A("  s_mov_b32 s34, 0x1000"); A("  s_mov_b32 s35, 0x20000")
    for r in range(36): A(f"  v_mov_b32 v{ACC+r}, 0")
    A(f"  s_mov_b32 s{S_NEED}, 3"); A(f"  s_mov_b32 s{S_P}, 0")
    A("  s_barrier")
    A("  s_waitcnt vmcnt(0)")
    for t in range(4):
        c = "0" if t == 0 else vr(DQ)
        A(f"  v_mfma_f32_16x16x32_bf16 {vr(DQ)}, {vr(Wf+4*t)}, {vr(QF+4*t)}, {c}")
        for k in range(4):
            pp = PA if k % 2 == 0 else PB
            cc = "0" if (t == 0 and k < 2) else f"v{pp}"
            A(f"  v_dot2_f32_bf16 v{pp}, v{QF+4*t+k}, v{QF+4*t+k}, {cc}")
    A(f"  v_add_f32 v{PA}, v{PA}, v{PB}"); A(f"  v_mfma_f32_16x16x4_f32 {vr(DQ)}, v{CBV}, v{PA}, {vr(DQ)}")
    for r in range(4): A(f"  v_fma_f32 v{PHQ+r}, v{DQ+r}, s{S_C1}, -2.0")
    for r in range(4): A(f"  v_exp_f32 v{PHQ+r}, v{PHQ+r}")
    for r in range(4): A(f"  v_add_f32 v{PHQ+r}, 0x358637bd, v{PHQ+r}")
    stamp(1)
    def poll(tag, inc):
        o = [f"  s_cmp_ge_u32 s{S_P}, s{S_NEED}", f"  s_cbranch_scc1 LC_ok{tag}", f"LC_poll{tag}:"]
        if sleep: o.append(f"  s_sleep {sleep}")
        o += [f"  ds_read_b32 v{V_P}, v{V_FL}", "  s_waitcnt lgkmcnt(0)", f"  v_readfirstlane_b32 s{S_P}, v{V_P}",
              f"  s_cmp_ge_u32 s{S_P}, s{S_NEED}", f"  s_cbranch_scc0 LC_poll{tag}", f"LC_ok{tag}:", f"  s_add_u32 s{S_NEED}, s{S_NEED}, {inc}"]
        return o
    def ktile(KF, Dr):
        o = []
        for t in range(4):
            c = "0" if t == 0 else vr(Dr)
            o.append(f"  v_mfma_f32_16x16x32_bf16 {vr(Dr)}, {vr(KF+4*t)}, {vr(Wf+4*t)}, {c}")
            for k in range(4):
                p = PA if k % 2 == 0 else PB
                cc = "0" if (t == 0 and k < 2) else f"v{p}"
                o.append(f"  v_dot2_f32_bf16 v{p}, v{KF+4*t+k}, v{KF+4*t+k}, {cc}")
        o += [f"  v_add_f32 v{PA}, v{PA}, v{PB}", f"  v_mfma_f32_16x16x4_f32 {vr(Dr)}, v{PA}, v{CBV}, {vr(Dr)}"]
        return o
    def PH(T):
        Dr = D1A if T == 0 else D1B
        o = [f"  v_fma_f32 v{X+r}, v{Dr+r}, s{S_C1}, -2.0" for r in range(4)]
        o += [f"  v_exp_f32 v{X+r}, v{X+r}" for r in range(4)]
        o += [f"  v_add_f32 v{X+r}, 0x358637bd, v{X+r}" for r in range(4)]
        o += [f"  v_cvt_pk_bf16_f32 v{A2+2*T}, v{X}, v{X+1}", f"  v_cvt_pk_bf16_f32 v{A2+2*T+1}, v{X+2}, v{X+3}"]
        return o
    def VR(T, j): return VR0 + 16*T + 4*j
    def perms(e, B):
        sel = f"s{S_LO}" if e % 2 == 0 else f"s{S_HI}"
        return [f"  v_perm_b32 v{B+p}, v{VR(p >> 1, 2*(p&1)+1)+e//2}, v{VR(p >> 1, 2*(p&1))+e//2}, {sel}" for p in range(4)]
    def cpair(par):
        base = par * 4 * 4096
        o = poll(f"a{par}", 1)
        for t in range(4): o.append(f"  ds_read_b128 {vr(KF0+4*t)}, v{V_KR+t} offset:{base}")
        for t in range(4): o.append(f"  ds_read_b128 {vr(KF1+4*t)}, v{V_KR+t} offset:{base + 8192}")
        for j in range(4): o.append(f"  ds_read_b128 {vr(VR(0, j))}, v{V_VL} offset:{base + 4096 + 1024*j}")
        o.append("  s_waitcnt lgkmcnt(8)")
        o += ktile(KF0, D1A)
        o.append("  s_waitcnt lgkmcnt(4)")
        o += ktile(KF1, D1B)
        o += PH(0); o += PH(1)
        o += poll(f"b{par}", 3)
        for j in range(4): o.append(f"  ds_read_b128 {vr(VR(1, j))}, v{V_VL} offset:{base + 12288 + 1024*j}")
        o.append(f"  v_add_u32 v{V_FREE}, 1, v{V_FREE}")
        o.append("  s_waitcnt lgkmcnt(0)")
        o.append(f"  ds_write_b32 v{V_FL}, v{V_FREE} offset:4")
        o += perms(0, B0); o += perms(1, B1)
        for e in range(8):
            B = B0 if e % 2 == 0 else B1
            o.append(f"  v_mfma_f32_16x16x32_bf16 {vr(ACC+4*e)}, {vr(A2)}, {vr(B)}, {vr(ACC+4*e)}")
            if e + 2 < 8: o += perms(e+2, B)
        o.append(f"  v_mfma_f32_16x16x32_bf16 {vr(ZACC)}, {vr(A2)}, {vr(ONES)}, {vr(ZACC)}")
        return o
    A(f"  s_mov_b32 s{S_IT}, 0")
    A("LC_loop:")
    A(f"  s_cmp_lg_u32 s{S_IT}, 8"); A("  s_cbranch_scc1 LC_nosw"); A("  s_nop 7")
    for r in range(36): A(f"  v_mov_b32 v{ACCA+r}, v{ACC+r}")
    for r in range(36): A(f"  v_mov_b32 v{ACC+r}, 0")
    A("LC_nosw:")
    L.extend(cpair(0)); L.extend(cpair(1))
    A(f"  s_add_u32 s{S_IT}, s{S_IT}, 1"); A(f"  s_cmp_lg_u32 s{S_IT}, 16"); A("  s_cbranch_scc1 LC_loop")
    stamp(3)
    for e in range(9): A(f"  ds_write_b128 v{V_VL}, {vr(ACCA+4*e)} offset:{1024*e}")
    A("  s_nop 7")
    for e in range(9): A(f"  ds_write_b128 v{V_VL}, {vr(ACC+4*e)} offset:{9216 + 1024*e}")
    A("  s_lshr_b32 s53, s50, 1"); A("  s_and_b32 s54, s50, 1")
    A("  s_mul_i32 s55, s53, 9216")
    A(f"  v_add_u32 v{V_T2}, s55, v{V_VOFF}")
    A("  s_lshl_b32 s56, s54, 12")
    A(f"  v_add_u32 v{V_TMP}, s56, v{V_T2}")
    A(f"  v_add_u32 v{PA}, 0x10000, v{V_TMP}")
    A(f"  v_add_u32 v{PB}, 0x10000, v{V_T2}")
    A("  s_waitcnt lgkmcnt(0)")
    A("  s_barrier")
    stamp(4)
    RB = 136
    OUTA = ACC; DEN = ACC + 16; Z = RB + 64
    for k in [4, 0, 1, 2, 3]:
        for src in range(4):
            off = (src & 1) * 32768
            if k == 4: A(f"  ds_read_b128 {vr(RB + 16*k + 4*src)}, v{V_T2 if src < 2 else PB} offset:{off + 8192}")
            else: A(f"  ds_read_b128 {vr(RB + 16*k + 4*src)}, v{V_TMP if src < 2 else PA} offset:{off + 1024*k}")
    def sumgrp(k, gidx):
        b0 = RB + 16*k
        if gidx == 0: return [f"  v_add_f32 v{b0+r}, v{b0+r}, v{b0+4+r}" for r in range(4)]
        if gidx == 1: return [f"  v_add_f32 v{b0+8+r}, v{b0+8+r}, v{b0+12+r}" for r in range(4)]
        return [f"  v_add_f32 v{b0+r}, v{b0+r}, v{b0+8+r}" for r in range(4)]
    A("  s_waitcnt lgkmcnt(15)")
    for g_ in range(3): L.extend(sumgrp(4, g_))
    A(f"  v_mul_f32 v{X}, v{PHQ}, v{Z}")
    for r in range(1, 4): A(f"  v_fma_f32 v{X}, v{PHQ+r}, v{Z+r}, v{X}")
    A(f"  v_mov_b32 v{X+1}, 1.0")
    A("  s_waitcnt lgkmcnt(12)")
    L.extend(sumgrp(0, 0))
    A(f"  v_mfma_f32_16x16x4_f32 {vr(DEN)}, v{X}, v{X+1}, 0")
    L.extend(sumgrp(0, 1)); L.extend(sumgrp(0, 2))
    for k in range(4):
        b0 = RB + 16*k
        for r in range(4):
            c = "0" if r == 0 else vr(OUTA+4*k)
            A(f"  v_mfma_f32_16x16x4_f32 {vr(OUTA+4*k)}, v{PHQ+r}, v{b0+r}, {c}")
            if k < 3 and r < 3:
                if r == 0: A(f"  s_waitcnt lgkmcnt({8 - 4*k})")
                L.extend(sumgrp(k+1, r))
            if k == 3 and r == 0:
                for rr in range(4): A(f"  v_add_f32 v{DEN+rr}, 0x358637bd, v{DEN+rr}")
            if k == 3 and r == 1:
                for rr in range(4): A(f"  v_rcp_f32 v{DEN+rr}, v{DEN+rr}")
            if k == 3 and r == 2:
                A(f"  v_lshrrev_b32 v{V_TMP}, 5, v{V_LANE}")
                A(f"  v_cmp_eq_u32 vcc, s53, v{V_TMP}")
                A(f"  v_lshrrev_b32 v{V_TMP}, 4, v{V_LANE}")
                A(f"  v_lshlrev_b32 v{V_TMP}, 10, v{V_TMP}")
                A(f"  v_and_b32 v{V_T2}, 15, v{V_LANE}")
                A(f"  v_lshl_add_u32 v{V_TMP}, v{V_T2}, 4, v{V_TMP}")
                A(f"  s_lshl_b32 s56, s54, 3")
                A(f"  v_add_u32 v{V_TMP}, s56, v{V_TMP}")
    stamp(5)
    OUT = B0
    for r in range(4):
        for k in range(4): A(f"  v_mul_f32 v{OUTA+4*k+r}, v{OUTA+4*k+r}, v{DEN+r}")
        A(f"  v_cvt_pk_bf16_f32 v{OUT+2*r}, v{OUTA+r}, v{OUTA+4+r}")
        A(f"  v_cvt_pk_bf16_f32 v{OUT+2*r+1}, v{OUTA+8+r}, v{OUTA+12+r}")
    A(f"  s_and_saveexec_b64 s[58:59], vcc")
    sf = (" " + stflag) if stflag else ""
    for r in range(4):
        A(f"  buffer_store_dwordx2 {vr(OUT+2*r, 2)}, v{V_TMP}, s[32:35], 0 offen offset:{256*r}{sf}")
    A(f"  s_mov_b64 exec, s[58:59]")
    if ts:
        stamp(6)
        A("  s_waitcnt vmcnt(0)")
        A("  s_memrealtime s[62:63]")
        A("  s_getreg_b32 s64, hwreg(HW_REG_XCC_ID)")
        A("  s_waitcnt lgkmcnt(0)")
        A("  s_cmp_lg_u32 s3, 4"); A("  s_cbranch_scc1 L_end")
        A("  v_mov_b32 v10, s60"); A("  v_mov_b32 v11, s61"); A("  v_mov_b32 v12, s62"); A("  v_mov_b32 v13, s63")
        A("  v_mov_b32 v14, s64"); A("  v_mov_b32 v15, 0")
        A("  s_lshl_b32 s3, s2, 5"); A("  v_mov_b32 v9, s3")
        A("  v_cmp_eq_u32 vcc, 0, v0"); A("  s_and_saveexec_b64 s[46:47], vcc"); A("  s_cbranch_execz L_end")
        A("  global_store_dwordx4 v9, v[10:13], s[14:15]")
        A("  global_store_dwordx2 v9, v[14:15], s[14:15] offset:16")
        if ts == 2:
            A("  s_lshl_b32 s3, s2, 6"); A("  s_add_u32 s3, s3, 0x100000"); A("  v_mov_b32 v9, s3")
            for k in range(7):
                A(f"  v_mov_b32 v10, s{66+2*k}"); A(f"  v_mov_b32 v11, s{67+2*k}")
                A(f"  global_store_dwordx2 v9, v[10:11], s[14:15] offset:{8*k}")
    A("L_end:\n  s_endpgm")
    A(f""".section .rodata,"a"
.p2align 6
.amdhsa_kernel {KNAME}
  .amdhsa_next_free_vgpr 256
  .amdhsa_next_free_sgpr 96
  .amdhsa_accum_offset 256
  .amdhsa_group_segment_fixed_size 0
  .amdhsa_kernarg_size 56
  .amdhsa_user_sgpr_count 2
  .amdhsa_user_sgpr_kernarg_segment_ptr 1
  .amdhsa_system_sgpr_workgroup_id_x 1
.end_amdhsa_kernel""")
    lines = "\n".join(L).split("\n")
    lines = haz.fix(lines)
    i0 = lines.index("LC_loop:"); i1 = [k for k, l in enumerate(lines) if "s_cbranch_scc1 LC_loop" in l][0]
    body = lines[i0:i1+1]
    a = [k for k, l in enumerate(body) if "s_cbranch_scc1 LC_nosw" in l][0]; b = body.index("LC_nosw:")
    short = body[:a+1] + body[b:]
    def nopoll(seq):
        out = []; skip = False
        for l in seq:
            if l.startswith("LC_poll"): skip = True
            if l.startswith("LC_ok"): skip = False
            if not skip: out.append(l)
        return out
    for seq in (body + body, short + short, body + short, short + body, short + lines[i1+1:]):
        for f in (lambda x: x, nopoll):
            bad = haz.check(f(seq))
            assert not bad, bad[:3]
    open(path, "w").write("\n".join(lines) + "\n")
    return len(lines)

if __name__ == "__main__":
    name = sys.argv[1]
    kw = eval("dict(" + (sys.argv[2] if len(sys.argv) > 2 else "") + ")")
    print(name, gen4(name, **kw), "lines")
```

```python
import sys, math, struct, re
from gen import KNAME, HEADER, f2u, SCALE, C1, CB
import haz

def gen4(path, W=5, flag="nt", ts=0, W0=None, J0=0, Wt=None, J1=512, prio=3, stflag="", Wpat=None, cprio=0, sleep=0, fin=0, finit=9):
    NWG = 256; NPAIR = 32
    L = []; A = L.append
    def vr(b, n=4): return f"v[{b}:{b+n-1}]"
    fl = (" " + flag) if flag else ""
    FLAGS = 131072
    SP = FLAGS + 64
    lds_bytes = FLAGS + 64 + (4*7168 if fin else 0)
    A(HEADER.rstrip())
    A(f"; @launch grid=({NWG},1,1) block=(512,1,1) lds={lds_bytes}")
    A('.amdgcn_target "amdgcn-amd-amdhsa--gfx950"')
    A(".text")
    A(f".globl {KNAME}\n.p2align 8\n.type {KNAME},@function\n{KNAME}:")
    A(f"  s_cmp_ge_u32 s2, {NWG}")
    A("  s_cbranch_scc1 L_end")
    A("  s_load_dwordx8 s[4:11], s[0:1], 0")
    A("  s_load_dwordx2 s[12:13], s[0:1], 32")
    def stamp(k):
        if ts == 2: A(f"  s_memrealtime s[{66+2*k}:{67+2*k}]")
    if ts:
        A("  s_load_dwordx2 s[14:15], s[0:1], 48")
        A("  s_memrealtime s[60:61]")
    V_LANE, V_VOFF, V_TMP, V_T2 = 0, 1, 2, 3
    A(f"  v_lshrrev_b32 v{V_TMP}, 6, v0")
    A(f"  v_and_b32 v{V_LANE}, 63, v0")
    A(f"  v_readfirstlane_b32 s3, v{V_TMP}")
    A(f"  v_lshlrev_b32 v{V_VOFF}, 4, v{V_LANE}")
    A(f"  v_lshrrev_b32 v{V_T2}, 4, v{V_LANE}")
    A(f"  v_and_b32 v{V_TMP}, 15, v{V_LANE}")
    A("  s_and_b32 s50, s3, 3")
    A("  s_lshl_b32 s51, s50, 15")
    A("  s_lshl_b32 s52, s50, 4"); A(f"  s_add_u32 s52, s52, {FLAGS}")
    A("  s_cmp_ge_u32 s3, 4")
    A("  s_cbranch_scc1 L_consumer")
    V_KD = 4; V_FL = 8; V_FULL = 9; V_FREE = 10; PA, PB = 11, 12
    S_WOFF = 38; S_AD = (39, 40); S_N = 41; S_T = 48; S_U = 49; S_IT = 47; S_NEED = 44; S_F = 45
    if prio: A(f"  s_setprio {prio}")
    A(f"  v_lshlrev_b32 v{PA}, 2, v{V_T2}")
    A(f"  v_xor_b32 v{PA}, v{PA}, v{V_TMP}")
    for j in range(4):
        A(f"  v_xor_b32 v{PB}, {j}, v{PA}")
        A(f"  v_lshlrev_b32 v{PB}, 4, v{PB}")
        A(f"  v_lshl_add_u32 v{V_KD+j}, v{V_T2}, 8, v{PB}")
    A(f"  s_lshl_b32 s36, s2, 20")
    A(f"  s_lshl_b32 s{S_WOFF}, s50, 12")
    A("  s_mov_b32 s18, 0x100000"); A("  s_mov_b32 s19, 0x20000")
    A("  s_mov_b32 s22, 0x100000"); A("  s_mov_b32 s23, 0x20000")
    A(f"  s_mov_b32 s{S_N}, 0")
    A(f"  v_mov_b32 v{V_FL}, s52")
    A(f"  v_mov_b32 v{V_FULL}, 0")
    A(f"  v_mov_b32 v{V_FREE}, 0")
    A(f"  ds_write_b64 v{V_FL}, v[{V_FULL+1}:{V_FULL+2}]".replace(f"v[{V_FULL+1}:{V_FULL+2}]", f"v[{V_FULL}:{V_FULL+1}]") if False else f"  ds_write_b32 v{V_FL}, v{V_FULL}")
    A(f"  ds_write_b32 v{V_FL}, v{V_FREE} offset:4")
    if fin: A(f"  ds_write_b32 v{V_FL}, v{V_FREE} offset:8")
    A("  s_waitcnt lgkmcnt(0)")
    A("  s_add_u32 s16, s6, s36"); A("  s_addc_u32 s17, s7, 0")
    A("  s_add_u32 s20, s8, s36"); A("  s_addc_u32 s21, s9, 0")
    issued = []
    st = dict(comp=-1)
    def wfun(j):
        if W0 is not None and j < J0: return W0
        if Wt is not None and j >= J1: return Wt
        return W if Wpat is None else Wpat[j % len(Wpat)]
    def addr_code(n):
        s = S_AD[n & 1]
        return [f"  s_and_b32 s{S_T}, s{S_N}, 15", f"  s_lshl_b32 s{S_T}, s{S_T}, 15",
                f"  s_and_b32 s{S_U}, s{S_N}, 16", f"  s_lshl_b32 s{S_U}, s{S_U}, 10", f"  s_or_b32 s{S_T}, s{S_T}, s{S_U}",
                f"  s_and_b32 s{S_U}, s{S_N}, 32", f"  s_lshl_b32 s{S_U}, s{S_U}, 14", f"  s_or_b32 s{S_T}, s{S_T}, s{S_U}",
                f"  s_or_b32 s{s}, s{S_T}, s{S_WOFF}", f"  s_add_u32 s{S_N}, s{S_N}, 1"]
    lab = [0]
    def lslot(j, inloop):
        o = []
        g, r = divmod(j, 4); n, isv = divmod(g, 2)
        pre = []
        if r == 0:
            pre += [f"  s_add_u32 m0, s51, {(g % 8) * 4096}"]
            if not isv: pre += addr_code(n)
            else: pre += ["  s_nop 0"]
            if g % 4 == 0 and g >= 8:
                lab[0] += 1; k = lab[0]
                pre += ["  s_waitcnt lgkmcnt(0)", f"  v_readfirstlane_b32 s{S_F}, v{V_FREE}", f"  s_add_u32 s{S_NEED}, s{S_NEED}, 1",
                        f"LL_chk{k}:", f"  s_cmp_ge_u32 s{S_F}, s{S_NEED}", f"  s_cbranch_scc1 LL_ok{k}",
                        f"  ds_read_b32 v{V_FREE}, v{V_FL} offset:4", "  s_waitcnt lgkmcnt(0)", f"  v_readfirstlane_b32 s{S_F}, v{V_FREE}", f"  s_branch LL_chk{k}",
                        f"LL_ok{k}:"]
        o += pre
        w = wfun(j)
        pub = []
        if j - w > st["comp"]:
            c = len(issued) - 1 - issued.index(j - w)
            o.append(f"  s_waitcnt vmcnt({c})")
            old = st["comp"]; st["comp"] = j - w
            ng_old = (old + 1) // 4; ng = (st["comp"] + 1) // 4
            if ng > ng_old:
                pub = [f"  v_add_u32 v{V_FULL}, {ng - ng_old}, v{V_FULL}", f"  ds_write_b32 v{V_FL}, v{V_FULL}"]
        s = S_AD[n & 1]
        if not isv: o.append(f"  buffer_load_dwordx4 v{V_KD+r}, s[16:19], s{s} offen offset:{1024*r}{fl} lds")
        else: o.append(f"  buffer_load_dwordx4 v{V_VOFF}, s[20:23], s{s} offen offset:{1024*r}{fl} lds")
        issued.append(j)
        o += pub
        if j % 16 == 13: o.append(f"  ds_read_b32 v{V_FREE}, v{V_FL} offset:4")
        return o
    A(f"  s_mov_b32 s{S_NEED}, 0")
    first = True
    for j in range(32):
        L.extend(lslot(j, False))
        if j == min(wfun(0), 15) - 1 - 0 and first:
            first = False
            A("  s_waitcnt lgkmcnt(0)")
            A("  s_barrier")
    A(f"  s_mov_b32 s{S_IT}, 1")
    A("LL_loop:")
    bodies = []
    ntail = 0 if Wt is None else 1
    for it in range(1, 16 - ntail):
        lab[0] = 100
        b = []
        for j in range(32*it, 32*it + 32): b += lslot(j, True)
        bodies.append(b)
    for b in bodies[1:]: assert b == bodies[0], "loader loop not periodic"
    L.extend(bodies[0])
    A(f"  s_add_u32 s{S_IT}, s{S_IT}, 1"); A(f"  s_cmp_lg_u32 s{S_IT}, {16 - ntail}"); A("  s_cbranch_scc1 LL_loop")
    lab[0] = 200
    for j in range(32*(16 - ntail), 512): L.extend(lslot(j, False))
    while st["comp"] < 511:
        nxt = min(511, (st["comp"] + 1) // 4 * 4 + 3)
        c = len(issued) - 1 - issued.index(nxt)
        A(f"  s_waitcnt vmcnt({c})")
        A(f"  v_add_u32 v{V_FULL}, 1, v{V_FULL}"); A(f"  ds_write_b32 v{V_FL}, v{V_FULL}")
        st["comp"] = nxt
    A("  s_waitcnt lgkmcnt(0)")
    A("  s_barrier")
    A("  s_endpgm")
    A("L_consumer:")
    V_KR = 4
    V_VL = 8; V_FL = 9; V_P = 10; V_FREE = 11
    CBV = 13; PA, PB = 14, 15
    Wf = 16; ONES = 32; D1A, D1B = 36, 40; X = 44; A2 = 48; B0, B1 = 52, 56; PHQ = 60
    ACC = 64; ZACC = 96; ACCA = 100
    KF0 = 136; KF1 = 152; VR0 = 168
    QF = 200; DQ = 216
    nv = 220
    S_C1 = 44; S_LO = 45; S_HI = 46; S_IT = 47; S_NEED = 48; S_P = 49
    if cprio: A(f"  s_setprio {cprio}")
    A(f"  s_lshl_b32 s37, s2, 12")
    A("  s_mov_b32 s26, 0x1000"); A("  s_mov_b32 s27, 0x20000")
    A("  s_mov_b32 s30, 0x1000"); A("  s_mov_b32 s31, 0x20000")
    A(f"  v_lshlrev_b32 v{V_P}, 8, v{V_TMP}")
    A(f"  v_lshl_add_u32 v{V_P}, v{V_T2}, 4, v{V_P}")
    A("  s_waitcnt lgkmcnt(0)")
    A("  s_mov_b32 s28, s10"); A("  s_mov_b32 s29, s11")
    A("  s_add_u32 s24, s4, s37"); A("  s_addc_u32 s25, s5, 0")
    for t in range(4): A(f"  buffer_load_dwordx4 {vr(Wf+4*t)}, v{V_P}, s[28:31], 0 offen offset:{64*t}")
    for t in range(4): A(f"  buffer_load_dwordx4 {vr(QF+4*t)}, v{V_P}, s[24:27], 0 offen offset:{64*t}")
    A(f"  v_and_b32 v{PA}, 3, v{V_TMP}"); A(f"  v_lshlrev_b32 v{PA}, 10, v{PA}"); A(f"  v_lshrrev_b32 v{PB}, 2, v{V_TMP}")
    A(f"  v_lshl_add_u32 v{PA}, v{PB}, 8, v{PA}"); A(f"  v_add_u32 v{PA}, s51, v{PA}"); A(f"  v_xor_b32 v{PB}, v{V_T2}, v{V_TMP}")
    for t in range(4):
        A(f"  v_xor_b32 v{X}, {4*t}, v{PB}"); A(f"  v_lshl_add_u32 v{V_KR+t}, v{X}, 4, v{PA}")
    A(f"  v_add_u32 v{V_VL}, s51, v{V_VOFF}")
    A(f"  v_mov_b32 v{V_FL}, s52")
    A(f"  v_mov_b32 v{V_FREE}, 0")
    A(f"  s_mov_b32 s{S_C1}, {hex(f2u(C1))}"); A(f"  s_mov_b32 s{S_LO}, 0x05040100"); A(f"  s_mov_b32 s{S_HI}, 0x07060302")
    A(f"  v_mov_b32 v{CBV}, {hex(f2u(CB))}")
    for r in range(4): A(f"  v_mov_b32 v{ONES+r}, 0x3f803f80")
    A("  s_add_u32 s32, s12, s37"); A("  s_addc_u32 s33, s13, 0"); A("  s_mov_b32 s34, 0x1000"); A("  s_mov_b32 s35, 0x20000")
    for r in range(36): A(f"  v_mov_b32 v{ACC+r}, 0")
    A(f"  s_mov_b32 s{S_NEED}, 3"); A(f"  s_mov_b32 s{S_P}, 0")
    A("  s_barrier")
    A("  s_waitcnt vmcnt(0)")
    for t in range(4):
        c = "0" if t == 0 else vr(DQ)
        A(f"  v_mfma_f32_16x16x32_bf16 {vr(DQ)}, {vr(Wf+4*t)}, {vr(QF+4*t)}, {c}")
        for k in range(4):
            pp = PA if k % 2 == 0 else PB
            cc = "0" if (t == 0 and k < 2) else f"v{pp}"
            A(f"  v_dot2_f32_bf16 v{pp}, v{QF+4*t+k}, v{QF+4*t+k}, {cc}")
    A(f"  v_add_f32 v{PA}, v{PA}, v{PB}"); A(f"  v_mfma_f32_16x16x4_f32 {vr(DQ)}, v{CBV}, v{PA}, {vr(DQ)}")
    for r in range(4): A(f"  v_fma_f32 v{PHQ+r}, v{DQ+r}, s{S_C1}, -2.0")
    for r in range(4): A(f"  v_exp_f32 v{PHQ+r}, v{PHQ+r}")
    for r in range(4): A(f"  v_add_f32 v{PHQ+r}, 0x358637bd, v{PHQ+r}")
    stamp(1)
    def poll(tag, inc):
        o = [f"  s_cmp_ge_u32 s{S_P}, s{S_NEED}", f"  s_cbranch_scc1 LC_ok{tag}", f"LC_poll{tag}:"]
        if sleep: o.append(f"  s_sleep {sleep}")
        o += [f"  ds_read_b32 v{V_P}, v{V_FL}", "  s_waitcnt lgkmcnt(0)", f"  v_readfirstlane_b32 s{S_P}, v{V_P}",
              f"  s_cmp_ge_u32 s{S_P}, s{S_NEED}", f"  s_cbranch_scc0 LC_poll{tag}", f"LC_ok{tag}:", f"  s_add_u32 s{S_NEED}, s{S_NEED}, {inc}"]
        return o
    def ktile(KF, Dr):
        o = []
        for t in range(4):
            c = "0" if t == 0 else vr(Dr)
            o.append(f"  v_mfma_f32_16x16x32_bf16 {vr(Dr)}, {vr(KF+4*t)}, {vr(Wf+4*t)}, {c}")
            for k in range(4):
                p = PA if k % 2 == 0 else PB
                cc = "0" if (t == 0 and k < 2) else f"v{p}"
                o.append(f"  v_dot2_f32_bf16 v{p}, v{KF+4*t+k}, v{KF+4*t+k}, {cc}")
        o += [f"  v_add_f32 v{PA}, v{PA}, v{PB}", f"  v_mfma_f32_16x16x4_f32 {vr(Dr)}, v{PA}, v{CBV}, {vr(Dr)}"]
        return o
    def PH(T):
        Dr = D1A if T == 0 else D1B
        o = [f"  v_fma_f32 v{X+r}, v{Dr+r}, s{S_C1}, -2.0" for r in range(4)]
        o += [f"  v_exp_f32 v{X+r}, v{X+r}" for r in range(4)]
        o += [f"  v_add_f32 v{X+r}, 0x358637bd, v{X+r}" for r in range(4)]
        o += [f"  v_cvt_pk_bf16_f32 v{A2+2*T}, v{X}, v{X+1}", f"  v_cvt_pk_bf16_f32 v{A2+2*T+1}, v{X+2}, v{X+3}"]
        return o
    def VR(T, j): return VR0 + 16*T + 4*j
    def perms(e, B):
        sel = f"s{S_LO}" if e % 2 == 0 else f"s{S_HI}"
        return [f"  v_perm_b32 v{B+p}, v{VR(p >> 1, 2*(p&1)+1)+e//2}, v{VR(p >> 1, 2*(p&1))+e//2}, {sel}" for p in range(4)]
    def cpair(par):
        base = par * 4 * 4096
        o = poll(f"a{par}", 1)
        for t in range(4): o.append(f"  ds_read_b128 {vr(KF0+4*t)}, v{V_KR+t} offset:{base}")
        for t in range(4): o.append(f"  ds_read_b128 {vr(KF1+4*t)}, v{V_KR+t} offset:{base + 8192}")
        for j in range(4): o.append(f"  ds_read_b128 {vr(VR(0, j))}, v{V_VL} offset:{base + 4096 + 1024*j}")
        o.append("  s_waitcnt lgkmcnt(8)")
        o += ktile(KF0, D1A)
        o.append("  s_waitcnt lgkmcnt(4)")
        o += ktile(KF1, D1B)
        o += PH(0); o += PH(1)
        o += poll(f"b{par}", 3)
        for j in range(4): o.append(f"  ds_read_b128 {vr(VR(1, j))}, v{V_VL} offset:{base + 12288 + 1024*j}")
        o.append(f"  v_add_u32 v{V_FREE}, 1, v{V_FREE}")
        o.append("  s_waitcnt lgkmcnt(0)")
        o.append(f"  ds_write_b32 v{V_FL}, v{V_FREE} offset:4")
        o += perms(0, B0); o += perms(1, B1)
        for e in range(8):
            B = B0 if e % 2 == 0 else B1
            o.append(f"  v_mfma_f32_16x16x32_bf16 {vr(ACC+4*e)}, {vr(A2)}, {vr(B)}, {vr(ACC+4*e)}")
            if e + 2 < 8: o += perms(e+2, B)
        o.append(f"  v_mfma_f32_16x16x32_bf16 {vr(ZACC)}, {vr(A2)}, {vr(ONES)}, {vr(ZACC)}")
        return o
    A(f"  s_mov_b32 s{S_IT}, 0")
    A("LC_loop:")
    KEEP, ZK, OUTA_, DEN_, STA, STD, RBm = 100, 108, 112, 120, 124, 125, 136
    sf = (" " + stflag) if stflag else ""
    def den_code(Z, DENr):
        o = [f"  v_mul_f32 v{X}, v{PHQ}, v{Z}"] + [f"  v_fma_f32 v{X}, v{PHQ+r}, v{Z+r}, v{X}" for r in range(1, 4)]
        return o + [f"  v_mov_b32 v{X+1}, 1.0", f"  v_mfma_f32_16x16x4_f32 {vr(DENr)}, v{X}, v{X+1}, 0"]
    def staddr(head):
        return [f"  v_lshrrev_b32 v{STA}, 5, v{V_LANE}", f"  v_cmp_eq_u32 vcc, {head}, v{STA}",
                f"  v_lshrrev_b32 v{STA}, 4, v{V_LANE}", f"  v_lshlrev_b32 v{STA}, 10, v{STA}",
                f"  v_and_b32 v{STD}, 15, v{V_LANE}", f"  v_lshl_add_u32 v{STA}, v{STD}, 4, v{STA}",
                f"  s_lshl_b32 s56, s50, 2", f"  v_add_u32 v{STA}, s56, v{STA}"]
    if not fin:
        A(f"  s_cmp_lg_u32 s{S_IT}, 8"); A("  s_cbranch_scc1 LC_nosw"); A("  s_nop 7")
        for r in range(36): A(f"  v_mov_b32 v{ACCA+r}, v{ACC+r}")
        for r in range(36): A(f"  v_mov_b32 v{ACC+r}, 0")
        A("LC_nosw:")
    else:
        A(f"  s_cmp_lg_u32 s{S_IT}, 8"); A("  s_cbranch_scc1 LC_nosw"); A("  s_nop 7")
        A(f"  s_mul_i32 s53, s50, 7168"); A(f"  s_add_u32 s53, s53, {SP}")
        A(f"  v_add_u32 v{STA}, s53, v{V_VOFF}")
        A(f"  ds_write_b128 v{STA}, {vr(ZACC)} offset:6144")
        for j in range(4):
            A(f"  s_cmp_eq_u32 s50, {j}"); A(f"  s_cbranch_scc1 LC_keep{j}")
            A(f"  s_sub_u32 s54, {j - 1 + 4}, s50"); A("  s_and_b32 s54, s54, 3"); A("  s_lshl_b32 s54, s54, 11")
            A(f"  v_add_u32 v{STD}, s54, v{STA}")
            A(f"  ds_write_b128 v{STD}, {vr(ACC+8*j)}"); A(f"  ds_write_b128 v{STD}, {vr(ACC+8*j+4)} offset:1024")
            A(f"  s_branch LC_kn{j}")
            A(f"LC_keep{j}:")
            for r in range(8): A(f"  v_mov_b32 v{KEEP+r}, v{ACC+8*j+r}")
            A(f"LC_kn{j}:")
        for r in range(4): A(f"  v_mov_b32 v{ZK+r}, v{ZACC+r}")
        A(f"  v_mov_b32 v{STA}, {FLAGS}"); A(f"  v_mov_b32 v{STD}, 1"); A(f"  ds_add_u32 v{STA}, v{STD} offset:8")
        A("  s_waitcnt lgkmcnt(0)")
        for r in range(36): A(f"  v_mov_b32 v{ACC+r}, 0")
        A("LC_nosw:")
        A(f"  s_cmp_lg_u32 s{S_IT}, {finit}"); A("  s_cbranch_scc1 LC_nofin")
        A(f"  v_mov_b32 v{STA}, {FLAGS}")
        A("LC_pollA:")
        A(f"  ds_read_b32 v{STD}, v{STA} offset:8"); A("  s_waitcnt lgkmcnt(0)"); A(f"  v_readfirstlane_b32 s53, v{STD}")
        A("  s_cmp_ge_u32 s53, 256"); A("  s_cbranch_scc0 LC_pollA")
        for i in range(3):
            A(f"  s_add_u32 s53, s50, {1 + i}"); A("  s_and_b32 s53, s53, 3"); A("  s_mul_i32 s53, s53, 7168"); A(f"  s_add_u32 s53, s53, {SP}")
            A(f"  v_add_u32 v{STA+1+i}, s53, v{V_VOFF}")
        for k in (2, 0, 1):
            for i in range(3):
                off = 6144 if k == 2 else (2 - i)*2048 + 1024*k
                A(f"  ds_read_b128 {vr(RBm + 12*k + 4*i)}, v{STA+1+i} offset:{off}")
        A("  s_waitcnt lgkmcnt(0)")
        for k in (2, 0, 1):
            dst = ZK if k == 2 else KEEP + 4*k
            b = RBm + 12*k
            for r in range(4): A(f"  v_add_f32 v{b+r}, v{b+r}, v{b+4+r}")
            for r in range(4): A(f"  v_add_f32 v{dst+r}, v{dst+r}, v{b+8+r}")
            for r in range(4): A(f"  v_add_f32 v{dst+r}, v{dst+r}, v{b+r}")
        L.extend(den_code(ZK, DEN_))
        for r in range(4):
            for k in range(2):
                c = "0" if r == 0 else vr(OUTA_+4*k)
                A(f"  v_mfma_f32_16x16x4_f32 {vr(OUTA_+4*k)}, v{PHQ+r}, v{KEEP+4*k+r}, {c}")
        L.extend(staddr(0))
        for r in range(4): A(f"  v_add_f32 v{DEN_+r}, 0x358637bd, v{DEN_+r}")
        for r in range(4): A(f"  v_rcp_f32 v{DEN_+r}, v{DEN_+r}")
        for r in range(4):
            A(f"  v_mul_f32 v{OUTA_+r}, v{OUTA_+r}, v{DEN_+r}"); A(f"  v_mul_f32 v{OUTA_+4+r}, v{OUTA_+4+r}, v{DEN_+r}")
        for r in range(4): A(f"  v_cvt_pk_bf16_f32 v{STD+r}, v{OUTA_+r}, v{OUTA_+4+r}")
        A("  s_and_saveexec_b64 s[58:59], vcc")
        for r in range(4): A(f"  buffer_store_dword v{STD+r}, v{STA}, s[32:35], 0 offen offset:{256*r}{sf}")
        A("  s_mov_b64 exec, s[58:59]")
        A("LC_nofin:")
    L.extend(cpair(0)); L.extend(cpair(1))
    A(f"  s_add_u32 s{S_IT}, s{S_IT}, 1"); A(f"  s_cmp_lg_u32 s{S_IT}, 16"); A("  s_cbranch_scc1 LC_loop")
    stamp(3)
    if not fin:
        for e in range(9): A(f"  ds_write_b128 v{V_VL}, {vr(ACCA+4*e)} offset:{1024*e}")
        A("  s_nop 7")
        for e in range(9): A(f"  ds_write_b128 v{V_VL}, {vr(ACC+4*e)} offset:{9216 + 1024*e}")
        A("  s_lshr_b32 s53, s50, 1"); A("  s_and_b32 s54, s50, 1")
        A("  s_mul_i32 s55, s53, 9216")
        A(f"  v_add_u32 v{V_T2}, s55, v{V_VOFF}")
        A("  s_lshl_b32 s56, s54, 12")
        A(f"  v_add_u32 v{V_TMP}, s56, v{V_T2}")
        A(f"  v_add_u32 v{PA}, 0x10000, v{V_TMP}")
        A(f"  v_add_u32 v{PB}, 0x10000, v{V_T2}")
        A("  s_waitcnt lgkmcnt(0)")
        A("  s_barrier")
        stamp(4)
        RB = 136
        OUTA = ACC; DEN = ACC + 16; Z = RB + 64
        for k in [4, 0, 1, 2, 3]:
            for src in range(4):
                off = (src & 1) * 32768
                if k == 4: A(f"  ds_read_b128 {vr(RB + 16*k + 4*src)}, v{V_T2 if src < 2 else PB} offset:{off + 8192}")
                else: A(f"  ds_read_b128 {vr(RB + 16*k + 4*src)}, v{V_TMP if src < 2 else PA} offset:{off + 1024*k}")
        def sumgrp(k, gidx):
            b0 = RB + 16*k
            if gidx == 0: return [f"  v_add_f32 v{b0+r}, v{b0+r}, v{b0+4+r}" for r in range(4)]
            if gidx == 1: return [f"  v_add_f32 v{b0+8+r}, v{b0+8+r}, v{b0+12+r}" for r in range(4)]
            return [f"  v_add_f32 v{b0+r}, v{b0+r}, v{b0+8+r}" for r in range(4)]
        A("  s_waitcnt lgkmcnt(15)")
        for g_ in range(3): L.extend(sumgrp(4, g_))
        A(f"  v_mul_f32 v{X}, v{PHQ}, v{Z}")
        for r in range(1, 4): A(f"  v_fma_f32 v{X}, v{PHQ+r}, v{Z+r}, v{X}")
        A(f"  v_mov_b32 v{X+1}, 1.0")
        A("  s_waitcnt lgkmcnt(12)")
        L.extend(sumgrp(0, 0))
        A(f"  v_mfma_f32_16x16x4_f32 {vr(DEN)}, v{X}, v{X+1}, 0")
        L.extend(sumgrp(0, 1)); L.extend(sumgrp(0, 2))
        for k in range(4):
            b0 = RB + 16*k
            for r in range(4):
                c = "0" if r == 0 else vr(OUTA+4*k)
                A(f"  v_mfma_f32_16x16x4_f32 {vr(OUTA+4*k)}, v{PHQ+r}, v{b0+r}, {c}")
                if k < 3 and r < 3:
                    if r == 0: A(f"  s_waitcnt lgkmcnt({8 - 4*k})")
                    L.extend(sumgrp(k+1, r))
                if k == 3 and r == 0:
                    for rr in range(4): A(f"  v_add_f32 v{DEN+rr}, 0x358637bd, v{DEN+rr}")
                if k == 3 and r == 1:
                    for rr in range(4): A(f"  v_rcp_f32 v{DEN+rr}, v{DEN+rr}")
                if k == 3 and r == 2:
                    A(f"  v_lshrrev_b32 v{V_TMP}, 5, v{V_LANE}")
                    A(f"  v_cmp_eq_u32 vcc, s53, v{V_TMP}")
                    A(f"  v_lshrrev_b32 v{V_TMP}, 4, v{V_LANE}")
                    A(f"  v_lshlrev_b32 v{V_TMP}, 10, v{V_TMP}")
                    A(f"  v_and_b32 v{V_T2}, 15, v{V_LANE}")
                    A(f"  v_lshl_add_u32 v{V_TMP}, v{V_T2}, 4, v{V_TMP}")
                    A(f"  s_lshl_b32 s56, s54, 3")
                    A(f"  v_add_u32 v{V_TMP}, s56, v{V_TMP}")
        stamp(5)
        OUT = B0
        for r in range(4):
            for k in range(4): A(f"  v_mul_f32 v{OUTA+4*k+r}, v{OUTA+4*k+r}, v{DEN+r}")
            A(f"  v_cvt_pk_bf16_f32 v{OUT+2*r}, v{OUTA+r}, v{OUTA+4+r}")
            A(f"  v_cvt_pk_bf16_f32 v{OUT+2*r+1}, v{OUTA+8+r}, v{OUTA+12+r}")
        A(f"  s_and_saveexec_b64 s[58:59], vcc")
        sf = (" " + stflag) if stflag else ""
        for r in range(4):
            A(f"  buffer_store_dwordx2 {vr(OUT+2*r, 2)}, v{V_TMP}, s[32:35], 0 offen offset:{256*r}{sf}")
        A(f"  s_mov_b64 exec, s[58:59]")
    else:
        for e in range(9): A(f"  ds_write_b128 v{V_VL}, {vr(ACC+4*e)} offset:{1024*e}")
        A(f"  s_lshl_b32 s56, s50, 11")
        A(f"  v_add_u32 v{V_TMP}, s56, v{V_VOFF}")
        A(f"  v_add_u32 v{PA}, 0x10000, v{V_TMP}")
        A(f"  v_add_u32 v{PB}, 0x10000, v{V_VOFF}")
        L.extend(staddr(1))
        A("  s_waitcnt lgkmcnt(0)")
        A("  s_barrier")
        stamp(4)
        RB = 136; OUTB = ACC
        for k in (2, 0, 1):
            for w in range(4):
                off = (w & 1) * 32768
                if k == 2: A(f"  ds_read_b128 {vr(RB + 16*k + 4*w)}, v{V_VOFF if w < 2 else PB} offset:{off + 8192}")
                else: A(f"  ds_read_b128 {vr(RB + 16*k + 4*w)}, v{V_TMP if w < 2 else PA} offset:{off + 1024*k}")
        def sums(k):
            b0 = RB + 16*k
            return ([f"  v_add_f32 v{b0+r}, v{b0+r}, v{b0+4+r}" for r in range(4)] + [f"  v_add_f32 v{b0+8+r}, v{b0+8+r}, v{b0+12+r}" for r in range(4)]
                    + [f"  v_add_f32 v{b0+r}, v{b0+r}, v{b0+8+r}" for r in range(4)])
        A("  s_waitcnt lgkmcnt(8)")
        L.extend(sums(2))
        dn = den_code(RB + 32, DEN_)
        L.extend(dn[:-1])
        A("  s_waitcnt lgkmcnt(4)")
        s0 = sums(0)
        L.extend(s0[:4]); A(dn[-1]); L.extend(s0[4:])
        A("  s_waitcnt lgkmcnt(0)")
        s1 = sums(1)
        for r in range(4):
            A(f"  v_mfma_f32_16x16x4_f32 {vr(OUTB)}, v{PHQ+r}, v{RB+r}, {'0' if r == 0 else vr(OUTB)}")
            if r < 3: L.extend(s1[4*r:4*r+4])
        for r in range(4):
            A(f"  v_mfma_f32_16x16x4_f32 {vr(OUTB+4)}, v{PHQ+r}, v{RB+16+r}, {'0' if r == 0 else vr(OUTB+4)}")
            if r == 0:
                for rr in range(4): A(f"  v_add_f32 v{DEN_+rr}, 0x358637bd, v{DEN_+rr}")
            if r == 1:
                for rr in range(4): A(f"  v_rcp_f32 v{DEN_+rr}, v{DEN_+rr}")
        stamp(5)
        for r in range(4): A(f"  v_mul_f32 v{OUTB+r}, v{OUTB+r}, v{DEN_+r}")
        for r in range(4): A(f"  v_mul_f32 v{OUTB+4+r}, v{OUTB+4+r}, v{DEN_+r}")
        for r in range(4): A(f"  v_cvt_pk_bf16_f32 v{STD+r}, v{OUTB+r}, v{OUTB+4+r}")
        A("  s_and_saveexec_b64 s[58:59], vcc")
        for r in range(4): A(f"  buffer_store_dword v{STD+r}, v{STA}, s[32:35], 0 offen offset:{256*r}{sf}")
        A("  s_mov_b64 exec, s[58:59]")
    if ts:
        stamp(6)
        A("  s_waitcnt vmcnt(0)")
        A("  s_memrealtime s[62:63]")
        A("  s_getreg_b32 s64, hwreg(HW_REG_XCC_ID)")
        A("  s_waitcnt lgkmcnt(0)")
        A("  s_cmp_lg_u32 s3, 4"); A("  s_cbranch_scc1 L_end")
        A("  v_mov_b32 v10, s60"); A("  v_mov_b32 v11, s61"); A("  v_mov_b32 v12, s62"); A("  v_mov_b32 v13, s63")
        A("  v_mov_b32 v14, s64"); A("  v_mov_b32 v15, 0")
        A("  s_lshl_b32 s3, s2, 5"); A("  v_mov_b32 v9, s3")
        A("  v_cmp_eq_u32 vcc, 0, v0"); A("  s_and_saveexec_b64 s[46:47], vcc"); A("  s_cbranch_execz L_end")
        A("  global_store_dwordx4 v9, v[10:13], s[14:15]")
        A("  global_store_dwordx2 v9, v[14:15], s[14:15] offset:16")
        if ts == 2:
            A("  s_lshl_b32 s3, s2, 6"); A("  s_add_u32 s3, s3, 0x100000"); A("  v_mov_b32 v9, s3")
            for k in range(7):
                A(f"  v_mov_b32 v10, s{66+2*k}"); A(f"  v_mov_b32 v11, s{67+2*k}")
                A(f"  global_store_dwordx2 v9, v[10:11], s[14:15] offset:{8*k}")
    A("L_end:\n  s_endpgm")
    A(f""".section .rodata,"a"
.p2align 6
.amdhsa_kernel {KNAME}
  .amdhsa_next_free_vgpr 256
  .amdhsa_next_free_sgpr 96
  .amdhsa_accum_offset 256
  .amdhsa_group_segment_fixed_size 0
  .amdhsa_kernarg_size 56
  .amdhsa_user_sgpr_count 2
  .amdhsa_user_sgpr_kernarg_segment_ptr 1
  .amdhsa_system_sgpr_workgroup_id_x 1
.end_amdhsa_kernel""")
    lines = "\n".join(L).split("\n")
    lines = haz.fix(lines)
    i0 = lines.index("LC_loop:"); i1 = [k for k, l in enumerate(lines) if "s_cbranch_scc1 LC_loop" in l][0]
    body = lines[i0:i1+1]
    a = [k for k, l in enumerate(body) if "s_cbranch_scc1 LC_nosw" in l][0]; b = body.index("LC_nosw:")
    short = body[:a+1] + body[b:]
    if fin:
        a = [k for k, l in enumerate(short) if "s_cbranch_scc1 LC_nofin" in l][0]; b = short.index("LC_nofin:")
        only8 = body[:[k for k, l in enumerate(body) if "s_cbranch_scc1 LC_nofin" in l][0]+1] + body[body.index("LC_nofin:"):]
        onlyf = list(short)
        short = short[:a+1] + short[b:]
        for seq in (short + only8 + onlyf, short + onlyf + short, only8 + short):
            bad = haz.check(seq); assert not bad, bad[:3]
    def nopoll(seq):
        out = []; skip = False
        for l in seq:
            if l.startswith("LC_poll"): skip = True
            if l.startswith("LC_ok"): skip = False
            if not skip: out.append(l)
        return out
    for seq in (body + body, short + short, body + short, short + body, short + lines[i1+1:]):
        for f in (lambda x: x, nopoll):
            bad = haz.check(f(seq))
            assert not bad, bad[:3]
    open(path, "w").write("\n".join(lines) + "\n")
    return len(lines)

if __name__ == "__main__":
    name = sys.argv[1]
    kw = eval("dict(" + (sys.argv[2] if len(sys.argv) > 2 else "") + ")")
    print(name, gen4(name, **kw), "lines")
```

```python
import sys, math, struct, re
from gen import KNAME, HEADER, f2u, SCALE, C1, CB
import haz

def gen6(path, Ws=(5,6,8), tau=227, delta=0, Wfirst=5, lastmode=(31,2), rdslot=13, tslot=12, skip=2, ad=1, W=5, flag="nt", ts=0, W0=None, J0=0, Wt=None, J1=512, prio=3, stflag="", Wpat=None, cprio=0, sleep=0, fin=0, finit=9):
    NWG = 256; NPAIR = 32
    L = []; A = L.append
    def vr(b, n=4): return f"v[{b}:{b+n-1}]"
    fl = (" " + flag) if flag else ""
    FLAGS = 131072
    SP = FLAGS + 64
    lds_bytes = FLAGS + 64 + (4*7168 if fin else 0)
    A(HEADER.rstrip())
    A(f"; @launch grid=({NWG},1,1) block=(512,1,1) lds={lds_bytes}")
    A('.amdgcn_target "amdgcn-amd-amdhsa--gfx950"')
    A(".text")
    A(f".globl {KNAME}\n.p2align 8\n.type {KNAME},@function\n{KNAME}:")
    A(f"  s_cmp_ge_u32 s2, {NWG}")
    A("  s_cbranch_scc1 L_end")
    A("  s_load_dwordx8 s[4:11], s[0:1], 0")
    A("  s_load_dwordx2 s[12:13], s[0:1], 32")
    def stamp(k):
        if ts == 2: A(f"  s_memrealtime s[{66+2*k}:{67+2*k}]")
    if ts:
        A("  s_load_dwordx2 s[14:15], s[0:1], 48")
        A("  s_memrealtime s[60:61]")
    V_LANE, V_VOFF, V_TMP, V_T2 = 0, 1, 2, 3
    A(f"  v_lshrrev_b32 v{V_TMP}, 6, v0")
    A(f"  v_and_b32 v{V_LANE}, 63, v0")
    A(f"  v_readfirstlane_b32 s3, v{V_TMP}")
    A(f"  v_lshlrev_b32 v{V_VOFF}, 4, v{V_LANE}")
    A(f"  v_lshrrev_b32 v{V_T2}, 4, v{V_LANE}")
    A(f"  v_and_b32 v{V_TMP}, 15, v{V_LANE}")
    A("  s_and_b32 s50, s3, 3")
    A("  s_lshl_b32 s51, s50, 15")
    A("  s_lshl_b32 s52, s50, 4"); A(f"  s_add_u32 s52, s52, {FLAGS}")
    A("  s_cmp_ge_u32 s3, 4")
    A("  s_cbranch_scc1 L_consumer")
    V_KD = 4; V_FL = 8; V_FULL = 9; V_FREE = 10; PA, PB = 12, 13; V_BASE = 14
    S_WOFF = 38; S_AD = (39, 40); S_N = 41; S_T = 48; S_U = 49; S_IT = 47; S_NEED = 44; S_F = 45; S_MODE = 46; S_RB = 43
    S_T0 = 24; S_TN = 26; S_LC = 28
    if prio: A(f"  s_setprio {prio}")
    if ad: A(f"  s_memrealtime s[{S_T0}:{S_T0+1}]")
    A(f"  v_lshlrev_b32 v{PA}, 2, v{V_T2}")
    A(f"  v_xor_b32 v{PA}, v{PA}, v{V_TMP}")
    for j in range(4):
        A(f"  v_xor_b32 v{PB}, {j}, v{PA}")
        A(f"  v_lshlrev_b32 v{PB}, 4, v{PB}")
        A(f"  v_lshl_add_u32 v{V_KD+j}, v{V_T2}, 8, v{PB}")
    A(f"  s_lshl_b32 s36, s2, 20")
    A(f"  s_lshl_b32 s{S_WOFF}, s50, 12")
    A("  s_mov_b32 s18, 0x100000"); A("  s_mov_b32 s19, 0x20000")
    A("  s_mov_b32 s22, 0x100000"); A("  s_mov_b32 s23, 0x20000")
    A(f"  s_mov_b32 s{S_N}, 0")
    A(f"  v_mov_b32 v{V_FL}, s52")
    A(f"  v_mov_b32 v{V_FULL}, 0")
    A(f"  v_mov_b32 v{V_FREE}, 0")
    A(f"  v_mov_b32 v{V_BASE}, 1")
    A(f"  ds_write_b32 v{V_FL}, v{V_FULL}")
    A(f"  ds_write_b32 v{V_FL}, v{V_FREE} offset:4")
    if fin: A(f"  ds_write_b32 v{V_FL}, v{V_FREE} offset:8")
    A(f"  s_mov_b32 s{S_RB}, s51")
    A(f"  s_mov_b32 s{S_LC}, 0")
    A("  s_waitcnt lgkmcnt(0)")
    A("  s_add_u32 s16, s6, s36"); A("  s_addc_u32 s17, s7, 0")
    A("  s_add_u32 s20, s8, s36"); A("  s_addc_u32 s21, s9, 0")
    def addr_code(n):
        s = S_AD[n & 1]
        return [f"  s_and_b32 s{S_T}, s{S_N}, 15", f"  s_lshl_b32 s{S_T}, s{S_T}, 15",
                f"  s_and_b32 s{S_U}, s{S_N}, 16", f"  s_lshl_b32 s{S_U}, s{S_U}, 10", f"  s_or_b32 s{S_T}, s{S_T}, s{S_U}",
                f"  s_and_b32 s{S_U}, s{S_N}, 32", f"  s_lshl_b32 s{S_U}, s{S_U}, 14", f"  s_or_b32 s{S_T}, s{S_T}, s{S_U}",
                f"  s_or_b32 s{s}, s{S_T}, s{S_WOFF}", f"  s_add_u32 s{S_N}, s{S_N}, 1"]
    def lbody(W, first=False):
        assert 4 <= W <= 8
        o = []
        for q in range(16):
            g, r = divmod(q, 4); n, isv = divmod(g, 2)
            if r == 0:
                o.append(f"  s_add_u32 m0, s{S_RB}, {g * 4096}")
                if not isv: o += addr_code(n)
                else: o.append("  s_nop 0")
            if not (first and q < W): o.append(f"  s_waitcnt vmcnt({W-1})")
            s = S_AD[n & 1]
            if not isv: o.append(f"  buffer_load_dwordx4 v{V_KD+r}, s[16:19], s{s} offen offset:{1024*r}{fl} lds")
            else: o.append(f"  buffer_load_dwordx4 v{V_VOFF}, s[20:23], s{s} offen offset:{1024*r}{fl} lds")
            if (q - W + 1) % 4 == 0 and not (first and q < W):
                o += [f"  v_add_u32 v{V_FULL}, {(q - W + 1) // 4}, v{V_BASE}", f"  ds_write_b32 v{V_FL}, v{V_FULL}"]
            if q == rdslot: o.append(f"  ds_read_b32 v{V_FREE}, v{V_FL} offset:4")
            if ad and q == tslot: o.append(f"  s_memrealtime s[{S_TN}:{S_TN+1}]")
            if first and q == Wfirst - 1:
                o += ["  s_waitcnt lgkmcnt(0)", "  s_barrier"]
        return o
    A(f"  s_mov_b32 s{S_NEED}, -1")
    L.extend(lbody(Wfirst, True))
    A(f"  s_mov_b32 s{S_IT}, 1")
    if ad: A(f"  s_add_u32 s{S_T0}, s{S_T0}, {delta + (tau * tslot) // 16}")
    A("LL_loop:")
    A(f"  s_xor_b32 s{S_RB}, s{S_RB}, 16384")
    A(f"  v_add_u32 v{V_BASE}, 4, v{V_BASE}")
    A("  s_waitcnt lgkmcnt(0)")
    A(f"  v_readfirstlane_b32 s{S_F}, v{V_FREE}")
    A(f"  s_add_u32 s{S_NEED}, s{S_NEED}, 1")
    A("LL_chk:")
    A(f"  s_cmp_ge_i32 s{S_F}, s{S_NEED}"); A("  s_cbranch_scc1 LL_ok")
    A(f"  ds_read_b32 v{V_FREE}, v{V_FL} offset:4"); A("  s_waitcnt lgkmcnt(0)")
    A(f"  v_readfirstlane_b32 s{S_F}, v{V_FREE}"); A("  s_branch LL_chk")
    A("LL_ok:")
    if ad:
        A(f"  s_sub_u32 s{S_MODE}, s{S_TN}, s{S_T0}")
        A(f"  s_add_u32 s{S_T0}, s{S_T0}, {tau}")
        A(f"  s_cmp_gt_i32 s{S_MODE}, 0"); A(f"  s_cselect_b32 s{S_MODE}, 1, 0")
        A(f"  s_cmp_lt_u32 s{S_IT}, {skip}"); A(f"  s_cselect_b32 s{S_MODE}, 0, s{S_MODE}")
        A(f"  s_add_u32 s{S_LC}, s{S_LC}, s{S_MODE}")
    else:
        A(f"  s_mov_b32 s{S_MODE}, 0")
    if lastmode is not None:
        A(f"  s_cmp_ge_u32 s{S_IT}, {lastmode[0]}"); A(f"  s_cselect_b32 s{S_MODE}, {lastmode[1]}, s{S_MODE}")
    for k in range(1, len(Ws)):
        A(f"  s_cmp_eq_u32 s{S_MODE}, {k}"); A(f"  s_cbranch_scc1 LL_b{k}")
    for k in range(len(Ws)):
        A(f"LL_b{k}:")
        L.extend(lbody(Ws[k]))
        if k < len(Ws) - 1: A("  s_branch LL_next")
    A("LL_next:")
    A(f"  s_add_u32 s{S_IT}, s{S_IT}, 1"); A(f"  s_cmp_lg_u32 s{S_IT}, 32"); A("  s_cbranch_scc1 LL_loop")
    A("  s_waitcnt vmcnt(4)"); A(f"  v_add_u32 v{V_FULL}, 3, v{V_BASE}"); A(f"  ds_write_b32 v{V_FL}, v{V_FULL}")
    A("  s_waitcnt vmcnt(0)"); A(f"  v_add_u32 v{V_FULL}, 4, v{V_BASE}"); A(f"  ds_write_b32 v{V_FL}, v{V_FULL}")
    if ts:
        A(f"  v_mov_b32 v{V_FULL}, s{S_LC}"); A(f"  ds_write_b32 v{V_FL}, v{V_FULL} offset:12")
    A("  s_waitcnt lgkmcnt(0)")
    A("  s_barrier")
    A("  s_endpgm")
    A("L_consumer:")
    V_KR = 4
    V_VL = 8; V_FL = 9; V_P = 10; V_FREE = 11
    CBV = 13; PA, PB = 14, 15
    Wf = 16; ONES = 32; D1A, D1B = 36, 40; X = 44; A2 = 48; B0, B1 = 52, 56; PHQ = 60
    ACC = 64; ZACC = 96; ACCA = 100
    KF0 = 136; KF1 = 152; VR0 = 168
    QF = 200; DQ = 216
    nv = 220
    S_C1 = 44; S_LO = 45; S_HI = 46; S_IT = 47; S_NEED = 48; S_P = 49
    if cprio: A(f"  s_setprio {cprio}")
    A(f"  s_lshl_b32 s37, s2, 12")
    A("  s_mov_b32 s26, 0x1000"); A("  s_mov_b32 s27, 0x20000")
    A("  s_mov_b32 s30, 0x1000"); A("  s_mov_b32 s31, 0x20000")
    A(f"  v_lshlrev_b32 v{V_P}, 8, v{V_TMP}")
    A(f"  v_lshl_add_u32 v{V_P}, v{V_T2}, 4, v{V_P}")
    A("  s_waitcnt lgkmcnt(0)")
    A("  s_mov_b32 s28, s10"); A("  s_mov_b32 s29, s11")
    A("  s_add_u32 s24, s4, s37"); A("  s_addc_u32 s25, s5, 0")
    for t in range(4): A(f"  buffer_load_dwordx4 {vr(Wf+4*t)}, v{V_P}, s[28:31], 0 offen offset:{64*t}")
    for t in range(4): A(f"  buffer_load_dwordx4 {vr(QF+4*t)}, v{V_P}, s[24:27], 0 offen offset:{64*t}")
    A(f"  v_and_b32 v{PA}, 3, v{V_TMP}"); A(f"  v_lshlrev_b32 v{PA}, 10, v{PA}"); A(f"  v_lshrrev_b32 v{PB}, 2, v{V_TMP}")
    A(f"  v_lshl_add_u32 v{PA}, v{PB}, 8, v{PA}"); A(f"  v_add_u32 v{PA}, s51, v{PA}"); A(f"  v_xor_b32 v{PB}, v{V_T2}, v{V_TMP}")
    for t in range(4):
        A(f"  v_xor_b32 v{X}, {4*t}, v{PB}"); A(f"  v_lshl_add_u32 v{V_KR+t}, v{X}, 4, v{PA}")
    A(f"  v_add_u32 v{V_VL}, s51, v{V_VOFF}")
    A(f"  v_mov_b32 v{V_FL}, s52")
    A(f"  v_mov_b32 v{V_FREE}, 0")
    A(f"  s_mov_b32 s{S_C1}, {hex(f2u(C1))}"); A(f"  s_mov_b32 s{S_LO}, 0x05040100"); A(f"  s_mov_b32 s{S_HI}, 0x07060302")
    A(f"  v_mov_b32 v{CBV}, {hex(f2u(CB))}")
    for r in range(4): A(f"  v_mov_b32 v{ONES+r}, 0x3f803f80")
    A("  s_add_u32 s32, s12, s37"); A("  s_addc_u32 s33, s13, 0"); A("  s_mov_b32 s34, 0x1000"); A("  s_mov_b32 s35, 0x20000")
    for r in range(36): A(f"  v_mov_b32 v{ACC+r}, 0")
    A(f"  s_mov_b32 s{S_NEED}, 4"); A(f"  s_mov_b32 s{S_P}, 0")
    A("  s_barrier")
    A("  s_waitcnt vmcnt(0)")
    for t in range(4):
        c = "0" if t == 0 else vr(DQ)
        A(f"  v_mfma_f32_16x16x32_bf16 {vr(DQ)}, {vr(Wf+4*t)}, {vr(QF+4*t)}, {c}")
        for k in range(4):
            pp = PA if k % 2 == 0 else PB
            cc = "0" if (t == 0 and k < 2) else f"v{pp}"
            A(f"  v_dot2_f32_bf16 v{pp}, v{QF+4*t+k}, v{QF+4*t+k}, {cc}")
    A(f"  v_add_f32 v{PA}, v{PA}, v{PB}"); A(f"  v_mfma_f32_16x16x4_f32 {vr(DQ)}, v{CBV}, v{PA}, {vr(DQ)}")
    for r in range(4): A(f"  v_fma_f32 v{PHQ+r}, v{DQ+r}, s{S_C1}, -2.0")
    for r in range(4): A(f"  v_exp_f32 v{PHQ+r}, v{PHQ+r}")
    for r in range(4): A(f"  v_add_f32 v{PHQ+r}, 0x358637bd, v{PHQ+r}")
    stamp(1)
    def poll(tag, inc):
        o = [f"  s_cmp_ge_u32 s{S_P}, s{S_NEED}", f"  s_cbranch_scc1 LC_ok{tag}", f"LC_poll{tag}:"]
        if sleep: o.append(f"  s_sleep {sleep}")
        o += [f"  ds_read_b32 v{V_P}, v{V_FL}", "  s_waitcnt lgkmcnt(0)", f"  v_readfirstlane_b32 s{S_P}, v{V_P}",
              f"  s_cmp_ge_u32 s{S_P}, s{S_NEED}", f"  s_cbranch_scc0 LC_poll{tag}", f"LC_ok{tag}:", f"  s_add_u32 s{S_NEED}, s{S_NEED}, {inc}"]
        return o
    def ktile(KF, Dr):
        o = []
        for t in range(4):
            c = "0" if t == 0 else vr(Dr)
            o.append(f"  v_mfma_f32_16x16x32_bf16 {vr(Dr)}, {vr(KF+4*t)}, {vr(Wf+4*t)}, {c}")
            for k in range(4):
                p = PA if k % 2 == 0 else PB
                cc = "0" if (t == 0 and k < 2) else f"v{p}"
                o.append(f"  v_dot2_f32_bf16 v{p}, v{KF+4*t+k}, v{KF+4*t+k}, {cc}")
        o += [f"  v_add_f32 v{PA}, v{PA}, v{PB}", f"  v_mfma_f32_16x16x4_f32 {vr(Dr)}, v{PA}, v{CBV}, {vr(Dr)}"]
        return o
    def PH(T):
        Dr = D1A if T == 0 else D1B
        o = [f"  v_fma_f32 v{X+r}, v{Dr+r}, s{S_C1}, -2.0" for r in range(4)]
        o += [f"  v_exp_f32 v{X+r}, v{X+r}" for r in range(4)]
        o += [f"  v_add_f32 v{X+r}, 0x358637bd, v{X+r}" for r in range(4)]
        o += [f"  v_cvt_pk_bf16_f32 v{A2+2*T}, v{X}, v{X+1}", f"  v_cvt_pk_bf16_f32 v{A2+2*T+1}, v{X+2}, v{X+3}"]
        return o
    def VR(T, j): return VR0 + 16*T + 4*j
    def perms(e, B):
        sel = f"s{S_LO}" if e % 2 == 0 else f"s{S_HI}"
        return [f"  v_perm_b32 v{B+p}, v{VR(p >> 1, 2*(p&1)+1)+e//2}, v{VR(p >> 1, 2*(p&1))+e//2}, {sel}" for p in range(4)]
    def cpair(par):
        base = par * 4 * 4096
        o = poll(f"a{par}", 1)
        for t in range(4): o.append(f"  ds_read_b128 {vr(KF0+4*t)}, v{V_KR+t} offset:{base}")
        for t in range(4): o.append(f"  ds_read_b128 {vr(KF1+4*t)}, v{V_KR+t} offset:{base + 8192}")
        for j in range(4): o.append(f"  ds_read_b128 {vr(VR(0, j))}, v{V_VL} offset:{base + 4096 + 1024*j}")
        o.append("  s_waitcnt lgkmcnt(8)")
        o += ktile(KF0, D1A)
        o.append("  s_waitcnt lgkmcnt(4)")
        o += ktile(KF1, D1B)
        o += PH(0); o += PH(1)
        o += poll(f"b{par}", 3)
        for j in range(4): o.append(f"  ds_read_b128 {vr(VR(1, j))}, v{V_VL} offset:{base + 12288 + 1024*j}")
        o.append(f"  v_add_u32 v{V_FREE}, 1, v{V_FREE}")
        o.append("  s_waitcnt lgkmcnt(0)")
        o.append(f"  ds_write_b32 v{V_FL}, v{V_FREE} offset:4")
        o += perms(0, B0); o += perms(1, B1)
        for e in range(8):
            B = B0 if e % 2 == 0 else B1
            o.append(f"  v_mfma_f32_16x16x32_bf16 {vr(ACC+4*e)}, {vr(A2)}, {vr(B)}, {vr(ACC+4*e)}")
            if e + 2 < 8: o += perms(e+2, B)
        o.append(f"  v_mfma_f32_16x16x32_bf16 {vr(ZACC)}, {vr(A2)}, {vr(ONES)}, {vr(ZACC)}")
        return o
    A(f"  s_mov_b32 s{S_IT}, 0")
    A("LC_loop:")
    KEEP, ZK, OUTA_, DEN_, STA, STD, RBm = 100, 108, 112, 120, 124, 125, 136
    sf = (" " + stflag) if stflag else ""
    def den_code(Z, DENr):
        o = [f"  v_mul_f32 v{X}, v{PHQ}, v{Z}"] + [f"  v_fma_f32 v{X}, v{PHQ+r}, v{Z+r}, v{X}" for r in range(1, 4)]
        return o + [f"  v_mov_b32 v{X+1}, 1.0", f"  v_mfma_f32_16x16x4_f32 {vr(DENr)}, v{X}, v{X+1}, 0"]
    def staddr(head):
        return [f"  v_lshrrev_b32 v{STA}, 5, v{V_LANE}", f"  v_cmp_eq_u32 vcc, {head}, v{STA}",
                f"  v_lshrrev_b32 v{STA}, 4, v{V_LANE}", f"  v_lshlrev_b32 v{STA}, 10, v{STA}",
                f"  v_and_b32 v{STD}, 15, v{V_LANE}", f"  v_lshl_add_u32 v{STA}, v{STD}, 4, v{STA}",
                f"  s_lshl_b32 s56, s50, 2", f"  v_add_u32 v{STA}, s56, v{STA}"]
    if not fin:
        A(f"  s_cmp_lg_u32 s{S_IT}, 8"); A("  s_cbranch_scc1 LC_nosw"); A("  s_nop 7")
        for r in range(36): A(f"  v_mov_b32 v{ACCA+r}, v{ACC+r}")
        for r in range(36): A(f"  v_mov_b32 v{ACC+r}, 0")
        A("LC_nosw:")
    else:
        A(f"  s_cmp_lg_u32 s{S_IT}, 8"); A("  s_cbranch_scc1 LC_nosw"); A("  s_nop 7")
        A(f"  s_mul_i32 s53, s50, 7168"); A(f"  s_add_u32 s53, s53, {SP}")
        A(f"  v_add_u32 v{STA}, s53, v{V_VOFF}")
        A(f"  ds_write_b128 v{STA}, {vr(ZACC)} offset:6144")
        for j in range(4):
            A(f"  s_cmp_eq_u32 s50, {j}"); A(f"  s_cbranch_scc1 LC_keep{j}")
            A(f"  s_sub_u32 s54, {j - 1 + 4}, s50"); A("  s_and_b32 s54, s54, 3"); A("  s_lshl_b32 s54, s54, 11")
            A(f"  v_add_u32 v{STD}, s54, v{STA}")
            A(f"  ds_write_b128 v{STD}, {vr(ACC+8*j)}"); A(f"  ds_write_b128 v{STD}, {vr(ACC+8*j+4)} offset:1024")
            A(f"  s_branch LC_kn{j}")
            A(f"LC_keep{j}:")
            for r in range(8): A(f"  v_mov_b32 v{KEEP+r}, v{ACC+8*j+r}")
            A(f"LC_kn{j}:")
        for r in range(4): A(f"  v_mov_b32 v{ZK+r}, v{ZACC+r}")
        A(f"  v_mov_b32 v{STA}, {FLAGS}"); A(f"  v_mov_b32 v{STD}, 1"); A(f"  ds_add_u32 v{STA}, v{STD} offset:8")
        A("  s_waitcnt lgkmcnt(0)")
        for r in range(36): A(f"  v_mov_b32 v{ACC+r}, 0")
        A("LC_nosw:")
        A(f"  s_cmp_lg_u32 s{S_IT}, {finit}"); A("  s_cbranch_scc1 LC_nofin")
        A(f"  v_mov_b32 v{STA}, {FLAGS}")
        A("LC_pollA:")
        A(f"  ds_read_b32 v{STD}, v{STA} offset:8"); A("  s_waitcnt lgkmcnt(0)"); A(f"  v_readfirstlane_b32 s53, v{STD}")
        A("  s_cmp_ge_u32 s53, 256"); A("  s_cbranch_scc0 LC_pollA")
        for i in range(3):
            A(f"  s_add_u32 s53, s50, {1 + i}"); A("  s_and_b32 s53, s53, 3"); A("  s_mul_i32 s53, s53, 7168"); A(f"  s_add_u32 s53, s53, {SP}")
            A(f"  v_add_u32 v{STA+1+i}, s53, v{V_VOFF}")
        for k in (2, 0, 1):
            for i in range(3):
                off = 6144 if k == 2 else (2 - i)*2048 + 1024*k
                A(f"  ds_read_b128 {vr(RBm + 12*k + 4*i)}, v{STA+1+i} offset:{off}")
        A("  s_waitcnt lgkmcnt(0)")
        for k in (2, 0, 1):
            dst = ZK if k == 2 else KEEP + 4*k
            b = RBm + 12*k
            for r in range(4): A(f"  v_add_f32 v{b+r}, v{b+r}, v{b+4+r}")
            for r in range(4): A(f"  v_add_f32 v{dst+r}, v{dst+r}, v{b+8+r}")
            for r in range(4): A(f"  v_add_f32 v{dst+r}, v{dst+r}, v{b+r}")
        L.extend(den_code(ZK, DEN_))
        for r in range(4):
            for k in range(2):
                c = "0" if r == 0 else vr(OUTA_+4*k)
                A(f"  v_mfma_f32_16x16x4_f32 {vr(OUTA_+4*k)}, v{PHQ+r}, v{KEEP+4*k+r}, {c}")
        L.extend(staddr(0))
        for r in range(4): A(f"  v_add_f32 v{DEN_+r}, 0x358637bd, v{DEN_+r}")
        for r in range(4): A(f"  v_rcp_f32 v{DEN_+r}, v{DEN_+r}")
        for r in range(4):
            A(f"  v_mul_f32 v{OUTA_+r}, v{OUTA_+r}, v{DEN_+r}"); A(f"  v_mul_f32 v{OUTA_+4+r}, v{OUTA_+4+r}, v{DEN_+r}")
        for r in range(4): A(f"  v_cvt_pk_bf16_f32 v{STD+r}, v{OUTA_+r}, v{OUTA_+4+r}")
        A("  s_and_saveexec_b64 s[58:59], vcc")
        for r in range(4): A(f"  buffer_store_dword v{STD+r}, v{STA}, s[32:35], 0 offen offset:{256*r}{sf}")
        A("  s_mov_b64 exec, s[58:59]")
        A("LC_nofin:")
    L.extend(cpair(0)); L.extend(cpair(1))
    A(f"  s_add_u32 s{S_IT}, s{S_IT}, 1"); A(f"  s_cmp_lg_u32 s{S_IT}, 16"); A("  s_cbranch_scc1 LC_loop")
    stamp(3)
    if not fin:
        for e in range(9): A(f"  ds_write_b128 v{V_VL}, {vr(ACCA+4*e)} offset:{1024*e}")
        A("  s_nop 7")
        for e in range(9): A(f"  ds_write_b128 v{V_VL}, {vr(ACC+4*e)} offset:{9216 + 1024*e}")
        A("  s_lshr_b32 s53, s50, 1"); A("  s_and_b32 s54, s50, 1")
        A("  s_mul_i32 s55, s53, 9216")
        A(f"  v_add_u32 v{V_T2}, s55, v{V_VOFF}")
        A("  s_lshl_b32 s56, s54, 12")
        A(f"  v_add_u32 v{V_TMP}, s56, v{V_T2}")
        A(f"  v_add_u32 v{PA}, 0x10000, v{V_TMP}")
        A(f"  v_add_u32 v{PB}, 0x10000, v{V_T2}")
        A("  s_waitcnt lgkmcnt(0)")
        A("  s_barrier")
        stamp(4)
        RB = 136
        OUTA = ACC; DEN = ACC + 16; Z = RB + 64
        for k in [4, 0, 1, 2, 3]:
            for src in range(4):
                off = (src & 1) * 32768
                if k == 4: A(f"  ds_read_b128 {vr(RB + 16*k + 4*src)}, v{V_T2 if src < 2 else PB} offset:{off + 8192}")
                else: A(f"  ds_read_b128 {vr(RB + 16*k + 4*src)}, v{V_TMP if src < 2 else PA} offset:{off + 1024*k}")
        def sumgrp(k, gidx):
            b0 = RB + 16*k
            if gidx == 0: return [f"  v_add_f32 v{b0+r}, v{b0+r}, v{b0+4+r}" for r in range(4)]
            if gidx == 1: return [f"  v_add_f32 v{b0+8+r}, v{b0+8+r}, v{b0+12+r}" for r in range(4)]
            return [f"  v_add_f32 v{b0+r}, v{b0+r}, v{b0+8+r}" for r in range(4)]
        A("  s_waitcnt lgkmcnt(15)")
        for g_ in range(3): L.extend(sumgrp(4, g_))
        A(f"  v_mul_f32 v{X}, v{PHQ}, v{Z}")
        for r in range(1, 4): A(f"  v_fma_f32 v{X}, v{PHQ+r}, v{Z+r}, v{X}")
        A(f"  v_mov_b32 v{X+1}, 1.0")
        A("  s_waitcnt lgkmcnt(12)")
        L.extend(sumgrp(0, 0))
        A(f"  v_mfma_f32_16x16x4_f32 {vr(DEN)}, v{X}, v{X+1}, 0")
        L.extend(sumgrp(0, 1)); L.extend(sumgrp(0, 2))
        for k in range(4):
            b0 = RB + 16*k
            for r in range(4):
                c = "0" if r == 0 else vr(OUTA+4*k)
                A(f"  v_mfma_f32_16x16x4_f32 {vr(OUTA+4*k)}, v{PHQ+r}, v{b0+r}, {c}")
                if k < 3 and r < 3:
                    if r == 0: A(f"  s_waitcnt lgkmcnt({8 - 4*k})")
                    L.extend(sumgrp(k+1, r))
                if k == 3 and r == 0:
                    for rr in range(4): A(f"  v_add_f32 v{DEN+rr}, 0x358637bd, v{DEN+rr}")
                if k == 3 and r == 1:
                    for rr in range(4): A(f"  v_rcp_f32 v{DEN+rr}, v{DEN+rr}")
                if k == 3 and r == 2:
                    A(f"  v_lshrrev_b32 v{V_TMP}, 5, v{V_LANE}")
                    A(f"  v_cmp_eq_u32 vcc, s53, v{V_TMP}")
                    A(f"  v_lshrrev_b32 v{V_TMP}, 4, v{V_LANE}")
                    A(f"  v_lshlrev_b32 v{V_TMP}, 10, v{V_TMP}")
                    A(f"  v_and_b32 v{V_T2}, 15, v{V_LANE}")
                    A(f"  v_lshl_add_u32 v{V_TMP}, v{V_T2}, 4, v{V_TMP}")
                    A(f"  s_lshl_b32 s56, s54, 3")
                    A(f"  v_add_u32 v{V_TMP}, s56, v{V_TMP}")
        stamp(5)
        OUT = B0
        for r in range(4):
            for k in range(4): A(f"  v_mul_f32 v{OUTA+4*k+r}, v{OUTA+4*k+r}, v{DEN+r}")
            A(f"  v_cvt_pk_bf16_f32 v{OUT+2*r}, v{OUTA+r}, v{OUTA+4+r}")
            A(f"  v_cvt_pk_bf16_f32 v{OUT+2*r+1}, v{OUTA+8+r}, v{OUTA+12+r}")
        A(f"  s_and_saveexec_b64 s[58:59], vcc")
        sf = (" " + stflag) if stflag else ""
        for r in range(4):
            A(f"  buffer_store_dwordx2 {vr(OUT+2*r, 2)}, v{V_TMP}, s[32:35], 0 offen offset:{256*r}{sf}")
        A(f"  s_mov_b64 exec, s[58:59]")
    else:
        for e in range(9): A(f"  ds_write_b128 v{V_VL}, {vr(ACC+4*e)} offset:{1024*e}")
        A(f"  s_lshl_b32 s56, s50, 11")
        A(f"  v_add_u32 v{V_TMP}, s56, v{V_VOFF}")
        A(f"  v_add_u32 v{PA}, 0x10000, v{V_TMP}")
        A(f"  v_add_u32 v{PB}, 0x10000, v{V_VOFF}")
        L.extend(staddr(1))
        A("  s_waitcnt lgkmcnt(0)")
        A("  s_barrier")
        stamp(4)
        RB = 136; OUTB = ACC
        for k in (2, 0, 1):
            for w in range(4):
                off = (w & 1) * 32768
                if k == 2: A(f"  ds_read_b128 {vr(RB + 16*k + 4*w)}, v{V_VOFF if w < 2 else PB} offset:{off + 8192}")
                else: A(f"  ds_read_b128 {vr(RB + 16*k + 4*w)}, v{V_TMP if w < 2 else PA} offset:{off + 1024*k}")
        def sums(k):
            b0 = RB + 16*k
            return ([f"  v_add_f32 v{b0+r}, v{b0+r}, v{b0+4+r}" for r in range(4)] + [f"  v_add_f32 v{b0+8+r}, v{b0+8+r}, v{b0+12+r}" for r in range(4)]
                    + [f"  v_add_f32 v{b0+r}, v{b0+r}, v{b0+8+r}" for r in range(4)])
        A("  s_waitcnt lgkmcnt(8)")
        L.extend(sums(2))
        dn = den_code(RB + 32, DEN_)
        L.extend(dn[:-1])
        A("  s_waitcnt lgkmcnt(4)")
        s0 = sums(0)
        L.extend(s0[:4]); A(dn[-1]); L.extend(s0[4:])
        A("  s_waitcnt lgkmcnt(0)")
        s1 = sums(1)
        for r in range(4):
            A(f"  v_mfma_f32_16x16x4_f32 {vr(OUTB)}, v{PHQ+r}, v{RB+r}, {'0' if r == 0 else vr(OUTB)}")
            if r < 3: L.extend(s1[4*r:4*r+4])
        for r in range(4):
            A(f"  v_mfma_f32_16x16x4_f32 {vr(OUTB+4)}, v{PHQ+r}, v{RB+16+r}, {'0' if r == 0 else vr(OUTB+4)}")
            if r == 0:
                for rr in range(4): A(f"  v_add_f32 v{DEN_+rr}, 0x358637bd, v{DEN_+rr}")
            if r == 1:
                for rr in range(4): A(f"  v_rcp_f32 v{DEN_+rr}, v{DEN_+rr}")
        stamp(5)
        for r in range(4): A(f"  v_mul_f32 v{OUTB+r}, v{OUTB+r}, v{DEN_+r}")
        for r in range(4): A(f"  v_mul_f32 v{OUTB+4+r}, v{OUTB+4+r}, v{DEN_+r}")
        for r in range(4): A(f"  v_cvt_pk_bf16_f32 v{STD+r}, v{OUTB+r}, v{OUTB+4+r}")
        A("  s_and_saveexec_b64 s[58:59], vcc")
        for r in range(4): A(f"  buffer_store_dword v{STD+r}, v{STA}, s[32:35], 0 offen offset:{256*r}{sf}")
        A("  s_mov_b64 exec, s[58:59]")
    if ts:
        stamp(6)
        A("  s_waitcnt vmcnt(0)")
        A("  s_memrealtime s[62:63]")
        A("  s_getreg_b32 s64, hwreg(HW_REG_XCC_ID)")
        A("  s_waitcnt lgkmcnt(0)")
        A("  s_cmp_lg_u32 s3, 4"); A("  s_cbranch_scc1 L_end")
        A("  v_mov_b32 v10, s60"); A("  v_mov_b32 v11, s61"); A("  v_mov_b32 v12, s62"); A("  v_mov_b32 v13, s63")
        A("  v_mov_b32 v14, s64"); A(f"  v_mov_b32 v9, {FLAGS}"); A("  ds_read_b32 v15, v9 offset:12"); A("  s_waitcnt lgkmcnt(0)")
        A("  s_lshl_b32 s3, s2, 5"); A("  v_mov_b32 v9, s3")
        A("  v_cmp_eq_u32 vcc, 0, v0"); A("  s_and_saveexec_b64 s[46:47], vcc"); A("  s_cbranch_execz L_end")
        A("  global_store_dwordx4 v9, v[10:13], s[14:15]")
        A("  global_store_dwordx2 v9, v[14:15], s[14:15] offset:16")
        if ts == 2:
            A("  s_lshl_b32 s3, s2, 6"); A("  s_add_u32 s3, s3, 0x100000"); A("  v_mov_b32 v9, s3")
            for k in range(7):
                A(f"  v_mov_b32 v10, s{66+2*k}"); A(f"  v_mov_b32 v11, s{67+2*k}")
                A(f"  global_store_dwordx2 v9, v[10:11], s[14:15] offset:{8*k}")
    A("L_end:\n  s_endpgm")
    A(f""".section .rodata,"a"
.p2align 6
.amdhsa_kernel {KNAME}
  .amdhsa_next_free_vgpr 256
  .amdhsa_next_free_sgpr 96
  .amdhsa_accum_offset 256
  .amdhsa_group_segment_fixed_size 0
  .amdhsa_kernarg_size 56
  .amdhsa_user_sgpr_count 2
  .amdhsa_user_sgpr_kernarg_segment_ptr 1
  .amdhsa_system_sgpr_workgroup_id_x 1
.end_amdhsa_kernel""")
    lines = "\n".join(L).split("\n")
    lines = haz.fix(lines)
    i0 = lines.index("LC_loop:"); i1 = [k for k, l in enumerate(lines) if "s_cbranch_scc1 LC_loop" in l][0]
    body = lines[i0:i1+1]
    a = [k for k, l in enumerate(body) if "s_cbranch_scc1 LC_nosw" in l][0]; b = body.index("LC_nosw:")
    short = body[:a+1] + body[b:]
    if fin:
        a = [k for k, l in enumerate(short) if "s_cbranch_scc1 LC_nofin" in l][0]; b = short.index("LC_nofin:")
        only8 = body[:[k for k, l in enumerate(body) if "s_cbranch_scc1 LC_nofin" in l][0]+1] + body[body.index("LC_nofin:"):]
        onlyf = list(short)
        short = short[:a+1] + short[b:]
        for seq in (short + only8 + onlyf, short + onlyf + short, only8 + short):
            bad = haz.check(seq); assert not bad, bad[:3]
    def nopoll(seq):
        out = []; skip = False
        for l in seq:
            if l.startswith("LC_poll"): skip = True
            if l.startswith("LC_ok"): skip = False
            if not skip: out.append(l)
        return out
    for seq in (body + body, short + short, body + short, short + body, short + lines[i1+1:]):
        for f in (lambda x: x, nopoll):
            bad = haz.check(f(seq))
            assert not bad, bad[:3]
    open(path, "w").write("\n".join(lines) + "\n")
    return len(lines)

if __name__ == "__main__":
    name = sys.argv[1]
    kw = eval("dict(" + (sys.argv[2] if len(sys.argv) > 2 else "") + ")")
    print(name, gen6(name, **kw), "lines")
```

```python
import sys, math, struct, re
from gen import KNAME, HEADER, f2u, SCALE, C1, CB
import haz

def gen6(path, Ws=(5,6,8), tau=227, delta=0, Wfirst=5, lastmode=(31,2), rdslot=13, tslot=12, skip=2, ad=1, th=(0,), init=0, common=0, alt=0, W=5, flag="nt", ts=0, W0=None, J0=0, Wt=None, J1=512, prio=3, stflag="", Wpat=None, cprio=0, sleep=0, fin=0, finit=9):
    NWG = 256; NPAIR = 32
    L = []; A = L.append
    def vr(b, n=4): return f"v[{b}:{b+n-1}]"
    fl = (" " + flag) if flag else ""
    FLAGS = 131072
    SP = FLAGS + 64
    lds_bytes = FLAGS + 64 + (4*7168 if fin else 0)
    A(HEADER.rstrip())
    A(f"; @launch grid=({NWG},1,1) block=(512,1,1) lds={lds_bytes}")
    A('.amdgcn_target "amdgcn-amd-amdhsa--gfx950"')
    A(".text")
    A(f".globl {KNAME}\n.p2align 8\n.type {KNAME},@function\n{KNAME}:")
    A(f"  s_cmp_ge_u32 s2, {NWG}")
    A("  s_cbranch_scc1 L_end")
    A("  s_load_dwordx8 s[4:11], s[0:1], 0")
    A("  s_load_dwordx2 s[12:13], s[0:1], 32")
    def stamp(k):
        if ts == 2: A(f"  s_memrealtime s[{66+2*k}:{67+2*k}]")
    if ts:
        A("  s_load_dwordx2 s[14:15], s[0:1], 48")
        A("  s_memrealtime s[60:61]")
    V_LANE, V_VOFF, V_TMP, V_T2 = 0, 1, 2, 3
    A(f"  v_lshrrev_b32 v{V_TMP}, 6, v0")
    A(f"  v_and_b32 v{V_LANE}, 63, v0")
    A(f"  v_readfirstlane_b32 s3, v{V_TMP}")
    A(f"  v_lshlrev_b32 v{V_VOFF}, 4, v{V_LANE}")
    A(f"  v_lshrrev_b32 v{V_T2}, 4, v{V_LANE}")
    A(f"  v_and_b32 v{V_TMP}, 15, v{V_LANE}")
    A("  s_and_b32 s50, s3, 3")
    A("  s_lshl_b32 s51, s50, 15")
    A("  s_lshl_b32 s52, s50, 4"); A(f"  s_add_u32 s52, s52, {FLAGS}")
    A("  s_cmp_ge_u32 s3, 4")
    A("  s_cbranch_scc1 L_consumer")
    V_KD = 4; V_FL = 8; V_FULL = 9; V_FREE = 10; PA, PB = 12, 13; V_BASE = 14
    S_WOFF = 38; S_AD = (39, 40); S_N = 41; S_T = 48; S_U = 49; S_IT = 47; S_NEED = 44; S_F = 45; S_MODE = 46; S_RB = 43
    S_T0 = 24; S_TN = 26; S_LC = 28
    if prio: A(f"  s_setprio {prio}")
    if ad: A(f"  s_memrealtime s[{S_T0}:{S_T0+1}]")
    if common == 2: A("  s_load_dwordx2 s[32:33], s[0:1], 40")
    A(f"  v_lshlrev_b32 v{PA}, 2, v{V_T2}")
    A(f"  v_xor_b32 v{PA}, v{PA}, v{V_TMP}")
    for j in range(4):
        A(f"  v_xor_b32 v{PB}, {j}, v{PA}")
        A(f"  v_lshlrev_b32 v{PB}, 4, v{PB}")
        A(f"  v_lshl_add_u32 v{V_KD+j}, v{V_T2}, 8, v{PB}")
    A(f"  s_lshl_b32 s36, s2, 20")
    A(f"  s_lshl_b32 s{S_WOFF}, s50, 12")
    A("  s_mov_b32 s18, 0x100000"); A("  s_mov_b32 s19, 0x20000")
    A("  s_mov_b32 s22, 0x100000"); A("  s_mov_b32 s23, 0x20000")
    A(f"  s_mov_b32 s{S_N}, 0")
    A(f"  v_mov_b32 v{V_FL}, s52")
    A(f"  v_mov_b32 v{V_FULL}, 0")
    A(f"  v_mov_b32 v{V_FREE}, 0")
    A(f"  v_mov_b32 v{V_BASE}, 1")
    A(f"  ds_write_b32 v{V_FL}, v{V_FULL}")
    A(f"  ds_write_b32 v{V_FL}, v{V_FREE} offset:4")
    if fin: A(f"  ds_write_b32 v{V_FL}, v{V_FREE} offset:8")
    if common == 1: A(f"  ds_write_b32 v{V_FL}, v{V_FREE} offset:12")
    A(f"  s_mov_b32 s{S_RB}, s51")
    A(f"  s_mov_b32 s{S_LC}, 0")
    A("  s_waitcnt lgkmcnt(0)")
    A("  s_add_u32 s16, s6, s36"); A("  s_addc_u32 s17, s7, 0")
    A("  s_add_u32 s20, s8, s36"); A("  s_addc_u32 s21, s9, 0")
    if common == 2:
        A("  s_lshl_b32 s34, s2, 2"); A("  s_or_b32 s34, s34, s50"); A("  s_cmp_ge_u32 s34, 32"); A("  s_cbranch_scc1 LL_noat")
        A("  s_cmp_lg_u32 s50, 0"); A("  s_cbranch_scc1 LL_noat")
        A(f"  s_not_b32 s34, s{S_T0}")
        A("  s_atomic_umax s34, s[32:33], 0")
        A("LL_noat:")
    def addr_code(n):
        s = S_AD[n & 1]
        return [f"  s_and_b32 s{S_T}, s{S_N}, 15", f"  s_lshl_b32 s{S_T}, s{S_T}, 15",
                f"  s_and_b32 s{S_U}, s{S_N}, 16", f"  s_lshl_b32 s{S_U}, s{S_U}, 10", f"  s_or_b32 s{S_T}, s{S_T}, s{S_U}",
                f"  s_and_b32 s{S_U}, s{S_N}, 32", f"  s_lshl_b32 s{S_U}, s{S_U}, 14", f"  s_or_b32 s{S_T}, s{S_T}, s{S_U}",
                f"  s_or_b32 s{s}, s{S_T}, s{S_WOFF}", f"  s_add_u32 s{S_N}, s{S_N}, 1"]
    def lbody(W, first=False):
        assert 4 <= W <= 8
        o = []
        for q in range(16):
            g, r = divmod(q, 4); n, isv = divmod(g, 2)
            if r == 0:
                o.append(f"  s_add_u32 m0, s{S_RB}, {g * 4096}")
                if not isv: o += addr_code(n)
                else: o.append("  s_nop 0")
            if not (first and q < W): o.append(f"  s_waitcnt vmcnt({W-1})")
            s = S_AD[n & 1]
            if not isv: o.append(f"  buffer_load_dwordx4 v{V_KD+r}, s[16:19], s{s} offen offset:{1024*r}{fl} lds")
            else: o.append(f"  buffer_load_dwordx4 v{V_VOFF}, s[20:23], s{s} offen offset:{1024*r}{fl} lds")
            if (q - W + 1) % 4 == 0 and not (first and q < W):
                o += [f"  v_add_u32 v{V_FULL}, {(q - W + 1) // 4}, v{V_BASE}", f"  ds_write_b32 v{V_FL}, v{V_FULL}"]
            if q == rdslot:
                if common == 1: o.append(f"  ds_read2_b32 v[{V_FREE}:{V_FREE+1}], v{V_FL} offset0:1 offset1:3")
                else: o.append(f"  ds_read_b32 v{V_FREE}, v{V_FL} offset:4")
            if ad and q == tslot: o.append(f"  s_memrealtime s[{S_TN}:{S_TN+1}]")
            if common == 2 and q == tslot: o.append("  s_load_dword s31, s[32:33], 0 glc")
            if first and q == Wfirst - 1:
                o += ["  s_waitcnt lgkmcnt(0)", "  s_barrier"]
        return o
    A(f"  s_mov_b32 s{S_NEED}, -1")
    L.extend(lbody(Wfirst, True))
    A(f"  s_mov_b32 s{S_IT}, 1")
    if alt: A("  s_mov_b32 s35, 0")
    if ad and not common: A(f"  s_add_u32 s{S_T0}, s{S_T0}, {delta + (tau * tslot) // 16}")
    if common: A(f"  s_mov_b32 s30, {delta + (tau * tslot) // 16}")
    A("LL_loop:")
    A(f"  s_xor_b32 s{S_RB}, s{S_RB}, 16384")
    A(f"  v_add_u32 v{V_BASE}, 4, v{V_BASE}")
    A("  s_waitcnt lgkmcnt(0)")
    A(f"  v_readfirstlane_b32 s{S_F}, v{V_FREE}")
    if common == 1: A(f"  v_readfirstlane_b32 s31, v{V_FREE+1}")
    A(f"  s_add_u32 s{S_NEED}, s{S_NEED}, 1")
    A("LL_chk:")
    A(f"  s_cmp_ge_i32 s{S_F}, s{S_NEED}"); A("  s_cbranch_scc1 LL_ok")
    A(f"  ds_read_b32 v{V_FREE}, v{V_FL} offset:4"); A("  s_waitcnt lgkmcnt(0)")
    A(f"  v_readfirstlane_b32 s{S_F}, v{V_FREE}"); A("  s_branch LL_chk")
    A("LL_ok:")
    if ad:
        if common:
            if common == 2:
                A("  s_not_b32 s34, s31"); A(f"  s_cmp_eq_u32 s31, 0"); A(f"  s_cselect_b32 s31, s{S_T0}, s34")
            else:
                A(f"  s_cmp_eq_u32 s31, 0"); A(f"  s_cselect_b32 s31, s{S_T0}, s31")
            A(f"  s_sub_u32 s{S_MODE}, s{S_TN}, s31"); A(f"  s_sub_u32 s{S_MODE}, s{S_MODE}, s30")
            A(f"  s_add_u32 s30, s30, {tau}")
        else:
            A(f"  s_sub_u32 s{S_MODE}, s{S_TN}, s{S_T0}")
            A(f"  s_add_u32 s{S_T0}, s{S_T0}, {tau}")
        if len(th) == 1:
            A(f"  s_cmp_gt_i32 s{S_MODE}, {th[0]}"); A(f"  s_cselect_b32 s{S_MODE}, 1, 0")
        else:
            A("  s_mov_b32 s29, 0")
            for t in th:
                A(f"  s_cmp_gt_i32 s{S_MODE}, {t}"); A("  s_addc_u32 s29, s29, 0")
            A(f"  s_mov_b32 s{S_MODE}, s29")
        A(f"  s_cmp_lt_u32 s{S_IT}, {skip}"); A(f"  s_cselect_b32 s{S_MODE}, {init}, s{S_MODE}")
        if alt:
            A(f"  s_andn2_b32 s{S_MODE}, s{S_MODE}, s35"); A(f"  s_mov_b32 s35, s{S_MODE}")
        A(f"  s_add_u32 s{S_LC}, s{S_LC}, s{S_MODE}")
    else:
        A(f"  s_mov_b32 s{S_MODE}, 0")
    if lastmode is not None:
        A(f"  s_cmp_ge_u32 s{S_IT}, {lastmode[0]}"); A(f"  s_cselect_b32 s{S_MODE}, {lastmode[1]}, s{S_MODE}")
    for k in range(1, len(Ws)):
        A(f"  s_cmp_eq_u32 s{S_MODE}, {k}"); A(f"  s_cbranch_scc1 LL_b{k}")
    for k in range(len(Ws)):
        A(f"LL_b{k}:")
        L.extend(lbody(Ws[k]))
        if k < len(Ws) - 1: A("  s_branch LL_next")
    A("LL_next:")
    A(f"  s_add_u32 s{S_IT}, s{S_IT}, 1"); A(f"  s_cmp_lg_u32 s{S_IT}, 32"); A("  s_cbranch_scc1 LL_loop")
    A("  s_waitcnt vmcnt(4)"); A(f"  v_add_u32 v{V_FULL}, 3, v{V_BASE}"); A(f"  ds_write_b32 v{V_FL}, v{V_FULL}")
    A("  s_waitcnt vmcnt(0)"); A(f"  v_add_u32 v{V_FULL}, 4, v{V_BASE}"); A(f"  ds_write_b32 v{V_FL}, v{V_FULL}")
    if ts:
        A(f"  v_mov_b32 v{V_FULL}, s{S_LC}"); A(f"  ds_write_b32 v{V_FL}, v{V_FULL} offset:12")
    A("  s_waitcnt lgkmcnt(0)")
    A("  s_barrier")
    A("  s_endpgm")
    A("L_consumer:")
    V_KR = 4
    V_VL = 8; V_FL = 9; V_P = 10; V_FREE = 11
    CBV = 13; PA, PB = 14, 15
    Wf = 16; ONES = 32; D1A, D1B = 36, 40; X = 44; A2 = 48; B0, B1 = 52, 56; PHQ = 60
    ACC = 64; ZACC = 96; ACCA = 100
    KF0 = 136; KF1 = 152; VR0 = 168
    QF = 200; DQ = 216
    nv = 220
    S_C1 = 44; S_LO = 45; S_HI = 46; S_IT = 47; S_NEED = 48; S_P = 49
    if cprio: A(f"  s_setprio {cprio}")
    A(f"  s_lshl_b32 s37, s2, 12")
    A("  s_mov_b32 s26, 0x1000"); A("  s_mov_b32 s27, 0x20000")
    A("  s_mov_b32 s30, 0x1000"); A("  s_mov_b32 s31, 0x20000")
    A(f"  v_lshlrev_b32 v{V_P}, 8, v{V_TMP}")
    A(f"  v_lshl_add_u32 v{V_P}, v{V_T2}, 4, v{V_P}")
    A("  s_waitcnt lgkmcnt(0)")
    A("  s_mov_b32 s28, s10"); A("  s_mov_b32 s29, s11")
    A("  s_add_u32 s24, s4, s37"); A("  s_addc_u32 s25, s5, 0")
    for t in range(4): A(f"  buffer_load_dwordx4 {vr(Wf+4*t)}, v{V_P}, s[28:31], 0 offen offset:{64*t}")
    for t in range(4): A(f"  buffer_load_dwordx4 {vr(QF+4*t)}, v{V_P}, s[24:27], 0 offen offset:{64*t}")
    A(f"  v_and_b32 v{PA}, 3, v{V_TMP}"); A(f"  v_lshlrev_b32 v{PA}, 10, v{PA}"); A(f"  v_lshrrev_b32 v{PB}, 2, v{V_TMP}")
    A(f"  v_lshl_add_u32 v{PA}, v{PB}, 8, v{PA}"); A(f"  v_add_u32 v{PA}, s51, v{PA}"); A(f"  v_xor_b32 v{PB}, v{V_T2}, v{V_TMP}")
    for t in range(4):
        A(f"  v_xor_b32 v{X}, {4*t}, v{PB}"); A(f"  v_lshl_add_u32 v{V_KR+t}, v{X}, 4, v{PA}")
    A(f"  v_add_u32 v{V_VL}, s51, v{V_VOFF}")
    A(f"  v_mov_b32 v{V_FL}, s52")
    A(f"  v_mov_b32 v{V_FREE}, 0")
    A(f"  s_mov_b32 s{S_C1}, {hex(f2u(C1))}"); A(f"  s_mov_b32 s{S_LO}, 0x05040100"); A(f"  s_mov_b32 s{S_HI}, 0x07060302")
    A(f"  v_mov_b32 v{CBV}, {hex(f2u(CB))}")
    for r in range(4): A(f"  v_mov_b32 v{ONES+r}, 0x3f803f80")
    A("  s_add_u32 s32, s12, s37"); A("  s_addc_u32 s33, s13, 0"); A("  s_mov_b32 s34, 0x1000"); A("  s_mov_b32 s35, 0x20000")
    for r in range(36): A(f"  v_mov_b32 v{ACC+r}, 0")
    A(f"  s_mov_b32 s{S_NEED}, 4"); A(f"  s_mov_b32 s{S_P}, 0")
    if common == 1:
        A("  s_cmp_lg_u32 s50, 0"); A("  s_cbranch_scc1 LC_nocm")
        A("  s_load_dwordx2 s[16:17], s[0:1], 40")
        A("  s_memrealtime s[18:19]")
        A("  s_waitcnt lgkmcnt(0)")
        A("  s_not_b32 s18, s18"); A("  s_mov_b32 s19, s18")
        A("  s_atomic_umax s19, s[16:17], 0 glc")
        A("LC_nocm:")
    A("  s_barrier")
    if common == 1:
        A("  s_cmp_lg_u32 s50, 0"); A("  s_cbranch_scc1 LC_nocm2")
        A("  s_waitcnt lgkmcnt(0)")
        A("  s_max_u32 s19, s19, s18"); A("  s_not_b32 s19, s19")
        A(f"  v_and_b32 v{X}, 3, v{V_LANE}"); A(f"  v_lshlrev_b32 v{X}, 4, v{X}"); A(f"  v_add_u32 v{X}, {FLAGS + 12}, v{X}")
        A(f"  v_mov_b32 v{X+1}, s19"); A(f"  ds_write_b32 v{X}, v{X+1}")
        A("LC_nocm2:")
    A("  s_waitcnt vmcnt(0)")
    for t in range(4):
        c = "0" if t == 0 else vr(DQ)
        A(f"  v_mfma_f32_16x16x32_bf16 {vr(DQ)}, {vr(Wf+4*t)}, {vr(QF+4*t)}, {c}")
        for k in range(4):
            pp = PA if k % 2 == 0 else PB
            cc = "0" if (t == 0 and k < 2) else f"v{pp}"
            A(f"  v_dot2_f32_bf16 v{pp}, v{QF+4*t+k}, v{QF+4*t+k}, {cc}")
    A(f"  v_add_f32 v{PA}, v{PA}, v{PB}"); A(f"  v_mfma_f32_16x16x4_f32 {vr(DQ)}, v{CBV}, v{PA}, {vr(DQ)}")
    for r in range(4): A(f"  v_fma_f32 v{PHQ+r}, v{DQ+r}, s{S_C1}, -2.0")
    for r in range(4): A(f"  v_exp_f32 v{PHQ+r}, v{PHQ+r}")
    for r in range(4): A(f"  v_add_f32 v{PHQ+r}, 0x358637bd, v{PHQ+r}")
    stamp(1)
    def poll(tag, inc):
        o = [f"  s_cmp_ge_u32 s{S_P}, s{S_NEED}", f"  s_cbranch_scc1 LC_ok{tag}", f"LC_poll{tag}:"]
        if sleep: o.append(f"  s_sleep {sleep}")
        o += [f"  ds_read_b32 v{V_P}, v{V_FL}", "  s_waitcnt lgkmcnt(0)", f"  v_readfirstlane_b32 s{S_P}, v{V_P}",
              f"  s_cmp_ge_u32 s{S_P}, s{S_NEED}", f"  s_cbranch_scc0 LC_poll{tag}", f"LC_ok{tag}:", f"  s_add_u32 s{S_NEED}, s{S_NEED}, {inc}"]
        return o
    def ktile(KF, Dr):
        o = []
        for t in range(4):
            c = "0" if t == 0 else vr(Dr)
            o.append(f"  v_mfma_f32_16x16x32_bf16 {vr(Dr)}, {vr(KF+4*t)}, {vr(Wf+4*t)}, {c}")
            for k in range(4):
                p = PA if k % 2 == 0 else PB
                cc = "0" if (t == 0 and k < 2) else f"v{p}"
                o.append(f"  v_dot2_f32_bf16 v{p}, v{KF+4*t+k}, v{KF+4*t+k}, {cc}")
        o += [f"  v_add_f32 v{PA}, v{PA}, v{PB}", f"  v_mfma_f32_16x16x4_f32 {vr(Dr)}, v{PA}, v{CBV}, {vr(Dr)}"]
        return o
    def PH(T):
        Dr = D1A if T == 0 else D1B
        o = [f"  v_fma_f32 v{X+r}, v{Dr+r}, s{S_C1}, -2.0" for r in range(4)]
        o += [f"  v_exp_f32 v{X+r}, v{X+r}" for r in range(4)]
        o += [f"  v_add_f32 v{X+r}, 0x358637bd, v{X+r}" for r in range(4)]
        o += [f"  v_cvt_pk_bf16_f32 v{A2+2*T}, v{X}, v{X+1}", f"  v_cvt_pk_bf16_f32 v{A2+2*T+1}, v{X+2}, v{X+3}"]
        return o
    def VR(T, j): return VR0 + 16*T + 4*j
    def perms(e, B):
        sel = f"s{S_LO}" if e % 2 == 0 else f"s{S_HI}"
        return [f"  v_perm_b32 v{B+p}, v{VR(p >> 1, 2*(p&1)+1)+e//2}, v{VR(p >> 1, 2*(p&1))+e//2}, {sel}" for p in range(4)]
    def cpair(par):
        base = par * 4 * 4096
        o = poll(f"a{par}", 1)
        for t in range(4): o.append(f"  ds_read_b128 {vr(KF0+4*t)}, v{V_KR+t} offset:{base}")
        for t in range(4): o.append(f"  ds_read_b128 {vr(KF1+4*t)}, v{V_KR+t} offset:{base + 8192}")
        for j in range(4): o.append(f"  ds_read_b128 {vr(VR(0, j))}, v{V_VL} offset:{base + 4096 + 1024*j}")
        o.append("  s_waitcnt lgkmcnt(8)")
        o += ktile(KF0, D1A)
        o.append("  s_waitcnt lgkmcnt(4)")
        o += ktile(KF1, D1B)
        o += PH(0); o += PH(1)
        o += poll(f"b{par}", 3)
        for j in range(4): o.append(f"  ds_read_b128 {vr(VR(1, j))}, v{V_VL} offset:{base + 12288 + 1024*j}")
        o.append(f"  v_add_u32 v{V_FREE}, 1, v{V_FREE}")
        o.append("  s_waitcnt lgkmcnt(0)")
        o.append(f"  ds_write_b32 v{V_FL}, v{V_FREE} offset:4")
        o += perms(0, B0); o += perms(1, B1)
        for e in range(8):
            B = B0 if e % 2 == 0 else B1
            o.append(f"  v_mfma_f32_16x16x32_bf16 {vr(ACC+4*e)}, {vr(A2)}, {vr(B)}, {vr(ACC+4*e)}")
            if e + 2 < 8: o += perms(e+2, B)
        o.append(f"  v_mfma_f32_16x16x32_bf16 {vr(ZACC)}, {vr(A2)}, {vr(ONES)}, {vr(ZACC)}")
        return o
    A(f"  s_mov_b32 s{S_IT}, 0")
    A("LC_loop:")
    KEEP, ZK, OUTA_, DEN_, STA, STD, RBm = 100, 108, 112, 120, 124, 125, 136
    sf = (" " + stflag) if stflag else ""
    def den_code(Z, DENr):
        o = [f"  v_mul_f32 v{X}, v{PHQ}, v{Z}"] + [f"  v_fma_f32 v{X}, v{PHQ+r}, v{Z+r}, v{X}" for r in range(1, 4)]
        return o + [f"  v_mov_b32 v{X+1}, 1.0", f"  v_mfma_f32_16x16x4_f32 {vr(DENr)}, v{X}, v{X+1}, 0"]
    def staddr(head):
        return [f"  v_lshrrev_b32 v{STA}, 5, v{V_LANE}", f"  v_cmp_eq_u32 vcc, {head}, v{STA}",
                f"  v_lshrrev_b32 v{STA}, 4, v{V_LANE}", f"  v_lshlrev_b32 v{STA}, 10, v{STA}",
                f"  v_and_b32 v{STD}, 15, v{V_LANE}", f"  v_lshl_add_u32 v{STA}, v{STD}, 4, v{STA}",
                f"  s_lshl_b32 s56, s50, 2", f"  v_add_u32 v{STA}, s56, v{STA}"]
    if not fin:
        A(f"  s_cmp_lg_u32 s{S_IT}, 8"); A("  s_cbranch_scc1 LC_nosw"); A("  s_nop 7")
        for r in range(36): A(f"  v_mov_b32 v{ACCA+r}, v{ACC+r}")
        for r in range(36): A(f"  v_mov_b32 v{ACC+r}, 0")
        A("LC_nosw:")
    else:
        A(f"  s_cmp_lg_u32 s{S_IT}, 8"); A("  s_cbranch_scc1 LC_nosw"); A("  s_nop 7")
        A(f"  s_mul_i32 s53, s50, 7168"); A(f"  s_add_u32 s53, s53, {SP}")
        A(f"  v_add_u32 v{STA}, s53, v{V_VOFF}")
        A(f"  ds_write_b128 v{STA}, {vr(ZACC)} offset:6144")
        for j in range(4):
            A(f"  s_cmp_eq_u32 s50, {j}"); A(f"  s_cbranch_scc1 LC_keep{j}")
            A(f"  s_sub_u32 s54, {j - 1 + 4}, s50"); A("  s_and_b32 s54, s54, 3"); A("  s_lshl_b32 s54, s54, 11")
            A(f"  v_add_u32 v{STD}, s54, v{STA}")
            A(f"  ds_write_b128 v{STD}, {vr(ACC+8*j)}"); A(f"  ds_write_b128 v{STD}, {vr(ACC+8*j+4)} offset:1024")
            A(f"  s_branch LC_kn{j}")
            A(f"LC_keep{j}:")
            for r in range(8): A(f"  v_mov_b32 v{KEEP+r}, v{ACC+8*j+r}")
            A(f"LC_kn{j}:")
        for r in range(4): A(f"  v_mov_b32 v{ZK+r}, v{ZACC+r}")
        A(f"  v_mov_b32 v{STA}, {FLAGS}"); A(f"  v_mov_b32 v{STD}, 1"); A(f"  ds_add_u32 v{STA}, v{STD} offset:8")
        A("  s_waitcnt lgkmcnt(0)")
        for r in range(36): A(f"  v_mov_b32 v{ACC+r}, 0")
        A("LC_nosw:")
        A(f"  s_cmp_lg_u32 s{S_IT}, {finit}"); A("  s_cbranch_scc1 LC_nofin")
        A(f"  v_mov_b32 v{STA}, {FLAGS}")
        A("LC_pollA:")
        A(f"  ds_read_b32 v{STD}, v{STA} offset:8"); A("  s_waitcnt lgkmcnt(0)"); A(f"  v_readfirstlane_b32 s53, v{STD}")
        A("  s_cmp_ge_u32 s53, 256"); A("  s_cbranch_scc0 LC_pollA")
        for i in range(3):
            A(f"  s_add_u32 s53, s50, {1 + i}"); A("  s_and_b32 s53, s53, 3"); A("  s_mul_i32 s53, s53, 7168"); A(f"  s_add_u32 s53, s53, {SP}")
            A(f"  v_add_u32 v{STA+1+i}, s53, v{V_VOFF}")
        for k in (2, 0, 1):
            for i in range(3):
                off = 6144 if k == 2 else (2 - i)*2048 + 1024*k
                A(f"  ds_read_b128 {vr(RBm + 12*k + 4*i)}, v{STA+1+i} offset:{off}")
        A("  s_waitcnt lgkmcnt(0)")
        for k in (2, 0, 1):
            dst = ZK if k == 2 else KEEP + 4*k
            b = RBm + 12*k
            for r in range(4): A(f"  v_add_f32 v{b+r}, v{b+r}, v{b+4+r}")
            for r in range(4): A(f"  v_add_f32 v{dst+r}, v{dst+r}, v{b+8+r}")
            for r in range(4): A(f"  v_add_f32 v{dst+r}, v{dst+r}, v{b+r}")
        L.extend(den_code(ZK, DEN_))
        for r in range(4):
            for k in range(2):
                c = "0" if r == 0 else vr(OUTA_+4*k)
                A(f"  v_mfma_f32_16x16x4_f32 {vr(OUTA_+4*k)}, v{PHQ+r}, v{KEEP+4*k+r}, {c}")
        L.extend(staddr(0))
        for r in range(4): A(f"  v_add_f32 v{DEN_+r}, 0x358637bd, v{DEN_+r}")
        for r in range(4): A(f"  v_rcp_f32 v{DEN_+r}, v{DEN_+r}")
        for r in range(4):
            A(f"  v_mul_f32 v{OUTA_+r}, v{OUTA_+r}, v{DEN_+r}"); A(f"  v_mul_f32 v{OUTA_+4+r}, v{OUTA_+4+r}, v{DEN_+r}")
        for r in range(4): A(f"  v_cvt_pk_bf16_f32 v{STD+r}, v{OUTA_+r}, v{OUTA_+4+r}")
        A("  s_and_saveexec_b64 s[58:59], vcc")
        for r in range(4): A(f"  buffer_store_dword v{STD+r}, v{STA}, s[32:35], 0 offen offset:{256*r}{sf}")
        A("  s_mov_b64 exec, s[58:59]")
        A("LC_nofin:")
    L.extend(cpair(0)); L.extend(cpair(1))
    A(f"  s_add_u32 s{S_IT}, s{S_IT}, 1"); A(f"  s_cmp_lg_u32 s{S_IT}, 16"); A("  s_cbranch_scc1 LC_loop")
    stamp(3)
    if not fin:
        for e in range(9): A(f"  ds_write_b128 v{V_VL}, {vr(ACCA+4*e)} offset:{1024*e}")
        A("  s_nop 7")
        for e in range(9): A(f"  ds_write_b128 v{V_VL}, {vr(ACC+4*e)} offset:{9216 + 1024*e}")
        A("  s_lshr_b32 s53, s50, 1"); A("  s_and_b32 s54, s50, 1")
        A("  s_mul_i32 s55, s53, 9216")
        A(f"  v_add_u32 v{V_T2}, s55, v{V_VOFF}")
        A("  s_lshl_b32 s56, s54, 12")
        A(f"  v_add_u32 v{V_TMP}, s56, v{V_T2}")
        A(f"  v_add_u32 v{PA}, 0x10000, v{V_TMP}")
        A(f"  v_add_u32 v{PB}, 0x10000, v{V_T2}")
        A("  s_waitcnt lgkmcnt(0)")
        A("  s_barrier")
        stamp(4)
        RB = 136
        OUTA = ACC; DEN = ACC + 16; Z = RB + 64
        for k in [4, 0, 1, 2, 3]:
            for src in range(4):
                off = (src & 1) * 32768
                if k == 4: A(f"  ds_read_b128 {vr(RB + 16*k + 4*src)}, v{V_T2 if src < 2 else PB} offset:{off + 8192}")
                else: A(f"  ds_read_b128 {vr(RB + 16*k + 4*src)}, v{V_TMP if src < 2 else PA} offset:{off + 1024*k}")
        def sumgrp(k, gidx):
            b0 = RB + 16*k
            if gidx == 0: return [f"  v_add_f32 v{b0+r}, v{b0+r}, v{b0+4+r}" for r in range(4)]
            if gidx == 1: return [f"  v_add_f32 v{b0+8+r}, v{b0+8+r}, v{b0+12+r}" for r in range(4)]
            return [f"  v_add_f32 v{b0+r}, v{b0+r}, v{b0+8+r}" for r in range(4)]
        A("  s_waitcnt lgkmcnt(15)")
        for g_ in range(3): L.extend(sumgrp(4, g_))
        A(f"  v_mul_f32 v{X}, v{PHQ}, v{Z}")
        for r in range(1, 4): A(f"  v_fma_f32 v{X}, v{PHQ+r}, v{Z+r}, v{X}")
        A(f"  v_mov_b32 v{X+1}, 1.0")
        A("  s_waitcnt lgkmcnt(12)")
        L.extend(sumgrp(0, 0))
        A(f"  v_mfma_f32_16x16x4_f32 {vr(DEN)}, v{X}, v{X+1}, 0")
        L.extend(sumgrp(0, 1)); L.extend(sumgrp(0, 2))
        for k in range(4):
            b0 = RB + 16*k
            for r in range(4):
                c = "0" if r == 0 else vr(OUTA+4*k)
                A(f"  v_mfma_f32_16x16x4_f32 {vr(OUTA+4*k)}, v{PHQ+r}, v{b0+r}, {c}")
                if k < 3 and r < 3:
                    if r == 0: A(f"  s_waitcnt lgkmcnt({8 - 4*k})")
                    L.extend(sumgrp(k+1, r))
                if k == 3 and r == 0:
                    for rr in range(4): A(f"  v_add_f32 v{DEN+rr}, 0x358637bd, v{DEN+rr}")
                if k == 3 and r == 1:
                    for rr in range(4): A(f"  v_rcp_f32 v{DEN+rr}, v{DEN+rr}")
                if k == 3 and r == 2:
                    A(f"  v_lshrrev_b32 v{V_TMP}, 5, v{V_LANE}")
                    A(f"  v_cmp_eq_u32 vcc, s53, v{V_TMP}")
                    A(f"  v_lshrrev_b32 v{V_TMP}, 4, v{V_LANE}")
                    A(f"  v_lshlrev_b32 v{V_TMP}, 10, v{V_TMP}")
                    A(f"  v_and_b32 v{V_T2}, 15, v{V_LANE}")
                    A(f"  v_lshl_add_u32 v{V_TMP}, v{V_T2}, 4, v{V_TMP}")
                    A(f"  s_lshl_b32 s56, s54, 3")
                    A(f"  v_add_u32 v{V_TMP}, s56, v{V_TMP}")
        stamp(5)
        OUT = B0
        for r in range(4):
            for k in range(4): A(f"  v_mul_f32 v{OUTA+4*k+r}, v{OUTA+4*k+r}, v{DEN+r}")
            A(f"  v_cvt_pk_bf16_f32 v{OUT+2*r}, v{OUTA+r}, v{OUTA+4+r}")
            A(f"  v_cvt_pk_bf16_f32 v{OUT+2*r+1}, v{OUTA+8+r}, v{OUTA+12+r}")
        A(f"  s_and_saveexec_b64 s[58:59], vcc")
        sf = (" " + stflag) if stflag else ""
        for r in range(4):
            A(f"  buffer_store_dwordx2 {vr(OUT+2*r, 2)}, v{V_TMP}, s[32:35], 0 offen offset:{256*r}{sf}")
        A(f"  s_mov_b64 exec, s[58:59]")
    else:
        for e in range(9): A(f"  ds_write_b128 v{V_VL}, {vr(ACC+4*e)} offset:{1024*e}")
        A(f"  s_lshl_b32 s56, s50, 11")
        A(f"  v_add_u32 v{V_TMP}, s56, v{V_VOFF}")
        A(f"  v_add_u32 v{PA}, 0x10000, v{V_TMP}")
        A(f"  v_add_u32 v{PB}, 0x10000, v{V_VOFF}")
        L.extend(staddr(1))
        A("  s_waitcnt lgkmcnt(0)")
        A("  s_barrier")
        stamp(4)
        RB = 136; OUTB = ACC
        for k in (2, 0, 1):
            for w in range(4):
                off = (w & 1) * 32768
                if k == 2: A(f"  ds_read_b128 {vr(RB + 16*k + 4*w)}, v{V_VOFF if w < 2 else PB} offset:{off + 8192}")
                else: A(f"  ds_read_b128 {vr(RB + 16*k + 4*w)}, v{V_TMP if w < 2 else PA} offset:{off + 1024*k}")
        def sums(k):
            b0 = RB + 16*k
            return ([f"  v_add_f32 v{b0+r}, v{b0+r}, v{b0+4+r}" for r in range(4)] + [f"  v_add_f32 v{b0+8+r}, v{b0+8+r}, v{b0+12+r}" for r in range(4)]
                    + [f"  v_add_f32 v{b0+r}, v{b0+r}, v{b0+8+r}" for r in range(4)])
        A("  s_waitcnt lgkmcnt(8)")
        L.extend(sums(2))
        dn = den_code(RB + 32, DEN_)
        L.extend(dn[:-1])
        A("  s_waitcnt lgkmcnt(4)")
        s0 = sums(0)
        L.extend(s0[:4]); A(dn[-1]); L.extend(s0[4:])
        A("  s_waitcnt lgkmcnt(0)")
        s1 = sums(1)
        for r in range(4):
            A(f"  v_mfma_f32_16x16x4_f32 {vr(OUTB)}, v{PHQ+r}, v{RB+r}, {'0' if r == 0 else vr(OUTB)}")
            if r < 3: L.extend(s1[4*r:4*r+4])
        for r in range(4):
            A(f"  v_mfma_f32_16x16x4_f32 {vr(OUTB+4)}, v{PHQ+r}, v{RB+16+r}, {'0' if r == 0 else vr(OUTB+4)}")
            if r == 0:
                for rr in range(4): A(f"  v_add_f32 v{DEN_+rr}, 0x358637bd, v{DEN_+rr}")
            if r == 1:
                for rr in range(4): A(f"  v_rcp_f32 v{DEN_+rr}, v{DEN_+rr}")
        stamp(5)
        for r in range(4): A(f"  v_mul_f32 v{OUTB+r}, v{OUTB+r}, v{DEN_+r}")
        for r in range(4): A(f"  v_mul_f32 v{OUTB+4+r}, v{OUTB+4+r}, v{DEN_+r}")
        for r in range(4): A(f"  v_cvt_pk_bf16_f32 v{STD+r}, v{OUTB+r}, v{OUTB+4+r}")
        A("  s_and_saveexec_b64 s[58:59], vcc")
        for r in range(4): A(f"  buffer_store_dword v{STD+r}, v{STA}, s[32:35], 0 offen offset:{256*r}{sf}")
        A("  s_mov_b64 exec, s[58:59]")
    if ts:
        stamp(6)
        A("  s_waitcnt vmcnt(0)")
        A("  s_memrealtime s[62:63]")
        A("  s_getreg_b32 s64, hwreg(HW_REG_XCC_ID)")
        A("  s_waitcnt lgkmcnt(0)")
        A("  s_cmp_lg_u32 s3, 4"); A("  s_cbranch_scc1 L_end")
        A("  v_mov_b32 v10, s60"); A("  v_mov_b32 v11, s61"); A("  v_mov_b32 v12, s62"); A("  v_mov_b32 v13, s63")
        A("  v_mov_b32 v14, s64"); A(f"  v_mov_b32 v9, {FLAGS}"); A("  ds_read_b32 v15, v9 offset:12"); A("  s_waitcnt lgkmcnt(0)")
        A("  s_lshl_b32 s3, s2, 5"); A("  v_mov_b32 v9, s3")
        A("  v_cmp_eq_u32 vcc, 0, v0"); A("  s_and_saveexec_b64 s[46:47], vcc"); A("  s_cbranch_execz L_end")
        A("  global_store_dwordx4 v9, v[10:13], s[14:15]")
        A("  global_store_dwordx2 v9, v[14:15], s[14:15] offset:16")
        if ts == 2:
            A("  s_lshl_b32 s3, s2, 6"); A("  s_add_u32 s3, s3, 0x100000"); A("  v_mov_b32 v9, s3")
            for k in range(7):
                A(f"  v_mov_b32 v10, s{66+2*k}"); A(f"  v_mov_b32 v11, s{67+2*k}")
                A(f"  global_store_dwordx2 v9, v[10:11], s[14:15] offset:{8*k}")
    A("L_end:\n  s_endpgm")
    A(f""".section .rodata,"a"
.p2align 6
.amdhsa_kernel {KNAME}
  .amdhsa_next_free_vgpr 256
  .amdhsa_next_free_sgpr 96
  .amdhsa_accum_offset 256
  .amdhsa_group_segment_fixed_size 0
  .amdhsa_kernarg_size 56
  .amdhsa_user_sgpr_count 2
  .amdhsa_user_sgpr_kernarg_segment_ptr 1
  .amdhsa_system_sgpr_workgroup_id_x 1
.end_amdhsa_kernel""")
    lines = "\n".join(L).split("\n")
    lines = haz.fix(lines)
    i0 = lines.index("LC_loop:"); i1 = [k for k, l in enumerate(lines) if "s_cbranch_scc1 LC_loop" in l][0]
    body = lines[i0:i1+1]
    a = [k for k, l in enumerate(body) if "s_cbranch_scc1 LC_nosw" in l][0]; b = body.index("LC_nosw:")
    short = body[:a+1] + body[b:]
    if fin:
        a = [k for k, l in enumerate(short) if "s_cbranch_scc1 LC_nofin" in l][0]; b = short.index("LC_nofin:")
        only8 = body[:[k for k, l in enumerate(body) if "s_cbranch_scc1 LC_nofin" in l][0]+1] + body[body.index("LC_nofin:"):]
        onlyf = list(short)
        short = short[:a+1] + short[b:]
        for seq in (short + only8 + onlyf, short + onlyf + short, only8 + short):
            bad = haz.check(seq); assert not bad, bad[:3]
    def nopoll(seq):
        out = []; skip = False
        for l in seq:
            if l.startswith("LC_poll"): skip = True
            if l.startswith("LC_ok"): skip = False
            if not skip: out.append(l)
        return out
    for seq in (body + body, short + short, body + short, short + body, short + lines[i1+1:]):
        for f in (lambda x: x, nopoll):
            bad = haz.check(f(seq))
            assert not bad, bad[:3]
    open(path, "w").write("\n".join(lines) + "\n")
    return len(lines)

if __name__ == "__main__":
    name = sys.argv[1]
    kw = eval("dict(" + (sys.argv[2] if len(sys.argv) > 2 else "") + ")")
    print(name, gen6(name, **kw), "lines")
```

```python
import sys, math, struct, re
from gen import KNAME, HEADER, f2u, SCALE, C1, CB
import haz

def gen6(path, Ws=(5,6,8), tau=227, delta=0, Wfirst=5, lastmode=(31,2), rdslot=13, tslot=12, skip=2, ad=1, th=(0,), init=0, common=0, W=5, flag="nt", ts=0, W0=None, J0=0, Wt=None, J1=512, prio=3, stflag="", Wpat=None, cprio=0, sleep=0, fin=0, finit=9):
    NWG = 256; NPAIR = 32
    L = []; A = L.append
    def vr(b, n=4): return f"v[{b}:{b+n-1}]"
    fl = (" " + flag) if flag else ""
    FLAGS = 131072
    SP = FLAGS + 64
    lds_bytes = FLAGS + 64 + (4*7168 if fin else 0)
    A(HEADER.rstrip())
    A(f"; @launch grid=({NWG},1,1) block=(512,1,1) lds={lds_bytes}")
    A('.amdgcn_target "amdgcn-amd-amdhsa--gfx950"')
    A(".text")
    A(f".globl {KNAME}\n.p2align 8\n.type {KNAME},@function\n{KNAME}:")
    A(f"  s_cmp_ge_u32 s2, {NWG}")
    A("  s_cbranch_scc1 L_end")
    A("  s_load_dwordx8 s[4:11], s[0:1], 0")
    A("  s_load_dwordx2 s[12:13], s[0:1], 32")
    def stamp(k):
        if ts == 2: A(f"  s_memrealtime s[{66+2*k}:{67+2*k}]")
    if ts:
        A("  s_load_dwordx2 s[14:15], s[0:1], 48")
        A("  s_memrealtime s[60:61]")
    V_LANE, V_VOFF, V_TMP, V_T2 = 0, 1, 2, 3
    A(f"  v_lshrrev_b32 v{V_TMP}, 6, v0")
    A(f"  v_and_b32 v{V_LANE}, 63, v0")
    A(f"  v_readfirstlane_b32 s3, v{V_TMP}")
    A(f"  v_lshlrev_b32 v{V_VOFF}, 4, v{V_LANE}")
    A(f"  v_lshrrev_b32 v{V_T2}, 4, v{V_LANE}")
    A(f"  v_and_b32 v{V_TMP}, 15, v{V_LANE}")
    A("  s_and_b32 s50, s3, 3")
    A("  s_lshl_b32 s51, s50, 15")
    A("  s_lshl_b32 s52, s50, 4"); A(f"  s_add_u32 s52, s52, {FLAGS}")
    A("  s_cmp_ge_u32 s3, 4")
    A("  s_cbranch_scc1 L_consumer")
    V_KD = 4; V_FL = 8; V_FULL = 9; V_FREE = 10; PA, PB = 12, 13; V_BASE = 14
    S_WOFF = 38; S_AD = (39, 40); S_N = 41; S_T = 48; S_U = 49; S_IT = 47; S_NEED = 44; S_F = 45; S_MODE = 46; S_RB = 43
    S_T0 = 24; S_TN = 26; S_LC = 28
    if prio: A(f"  s_setprio {prio}")
    if ad: A(f"  s_memrealtime s[{S_T0}:{S_T0+1}]")
    if common == 2: A("  s_load_dwordx2 s[32:33], s[0:1], 40")
    A(f"  v_lshlrev_b32 v{PA}, 2, v{V_T2}")
    A(f"  v_xor_b32 v{PA}, v{PA}, v{V_TMP}")
    for j in range(4):
        A(f"  v_xor_b32 v{PB}, {j}, v{PA}")
        A(f"  v_lshlrev_b32 v{PB}, 4, v{PB}")
        A(f"  v_lshl_add_u32 v{V_KD+j}, v{V_T2}, 8, v{PB}")
    A(f"  s_lshl_b32 s36, s2, 20")
    A(f"  s_lshl_b32 s{S_WOFF}, s50, 12")
    A("  s_mov_b32 s18, 0x100000"); A("  s_mov_b32 s19, 0x20000")
    A("  s_mov_b32 s22, 0x100000"); A("  s_mov_b32 s23, 0x20000")
    A(f"  s_mov_b32 s{S_N}, 0")
    A(f"  v_mov_b32 v{V_FL}, s52")
    A(f"  v_mov_b32 v{V_FULL}, 0")
    A(f"  v_mov_b32 v{V_FREE}, 0")
    A(f"  v_mov_b32 v{V_BASE}, 1")
    A(f"  ds_write_b32 v{V_FL}, v{V_FULL}")
    A(f"  ds_write_b32 v{V_FL}, v{V_FREE} offset:4")
    if fin: A(f"  ds_write_b32 v{V_FL}, v{V_FREE} offset:8")
    if common == 1: A(f"  ds_write_b32 v{V_FL}, v{V_FREE} offset:12")
    A(f"  s_mov_b32 s{S_RB}, s51")
    A(f"  s_mov_b32 s{S_LC}, 0")
    A("  s_waitcnt lgkmcnt(0)")
    A("  s_add_u32 s16, s6, s36"); A("  s_addc_u32 s17, s7, 0")
    A("  s_add_u32 s20, s8, s36"); A("  s_addc_u32 s21, s9, 0")
    if common == 2:
        A("  s_lshl_b32 s34, s2, 2"); A("  s_or_b32 s34, s34, s50"); A("  s_cmp_ge_u32 s34, 32"); A("  s_cbranch_scc1 LL_noat")
        A("  s_cmp_lg_u32 s50, 0"); A("  s_cbranch_scc1 LL_noat")
        A(f"  s_not_b32 s34, s{S_T0}")
        A("  s_atomic_umax s34, s[32:33], 0")
        A("LL_noat:")
    def addr_code(n):
        s = S_AD[n & 1]
        return [f"  s_and_b32 s{S_T}, s{S_N}, 15", f"  s_lshl_b32 s{S_T}, s{S_T}, 15",
                f"  s_and_b32 s{S_U}, s{S_N}, 16", f"  s_lshl_b32 s{S_U}, s{S_U}, 10", f"  s_or_b32 s{S_T}, s{S_T}, s{S_U}",
                f"  s_and_b32 s{S_U}, s{S_N}, 32", f"  s_lshl_b32 s{S_U}, s{S_U}, 14", f"  s_or_b32 s{S_T}, s{S_T}, s{S_U}",
                f"  s_or_b32 s{s}, s{S_T}, s{S_WOFF}", f"  s_add_u32 s{S_N}, s{S_N}, 1"]
    def lbody(W, first=False):
        assert 4 <= W <= 8
        o = []
        for q in range(16):
            g, r = divmod(q, 4); n, isv = divmod(g, 2)
            if r == 0:
                o.append(f"  s_add_u32 m0, s{S_RB}, {g * 4096}")
                if not isv: o += addr_code(n)
                else: o.append("  s_nop 0")
            if not (first and q < W): o.append(f"  s_waitcnt vmcnt({W-1})")
            s = S_AD[n & 1]
            if not isv: o.append(f"  buffer_load_dwordx4 v{V_KD+r}, s[16:19], s{s} offen offset:{1024*r}{fl} lds")
            else: o.append(f"  buffer_load_dwordx4 v{V_VOFF}, s[20:23], s{s} offen offset:{1024*r}{fl} lds")
            if (q - W + 1) % 4 == 0 and not (first and q < W):
                o += [f"  v_add_u32 v{V_FULL}, {(q - W + 1) // 4}, v{V_BASE}", f"  ds_write_b32 v{V_FL}, v{V_FULL}"]
            if q == rdslot:
                if common == 1: o.append(f"  ds_read2_b32 v[{V_FREE}:{V_FREE+1}], v{V_FL} offset0:1 offset1:3")
                else: o.append(f"  ds_read_b32 v{V_FREE}, v{V_FL} offset:4")
            if ad and q == tslot: o.append(f"  s_memrealtime s[{S_TN}:{S_TN+1}]")
            if common == 2 and q == tslot: o.append("  s_load_dword s31, s[32:33], 0 glc")
            if first and q == Wfirst - 1:
                o += ["  s_waitcnt lgkmcnt(0)", "  s_barrier"]
        return o
    A(f"  s_mov_b32 s{S_NEED}, -1")
    L.extend(lbody(Wfirst, True))
    A(f"  s_mov_b32 s{S_IT}, 1")
    if ad and not common: A(f"  s_add_u32 s{S_T0}, s{S_T0}, {delta + (tau * tslot) // 16}")
    if common: A(f"  s_mov_b32 s30, {delta + (tau * tslot) // 16}")
    A("LL_loop:")
    A(f"  s_xor_b32 s{S_RB}, s{S_RB}, 16384")
    A(f"  v_add_u32 v{V_BASE}, 4, v{V_BASE}")
    A("  s_waitcnt lgkmcnt(0)")
    A(f"  v_readfirstlane_b32 s{S_F}, v{V_FREE}")
    if common == 1: A(f"  v_readfirstlane_b32 s31, v{V_FREE+1}")
    A(f"  s_add_u32 s{S_NEED}, s{S_NEED}, 1")
    A("LL_chk:")
    A(f"  s_cmp_ge_i32 s{S_F}, s{S_NEED}"); A("  s_cbranch_scc1 LL_ok")
    A(f"  ds_read_b32 v{V_FREE}, v{V_FL} offset:4"); A("  s_waitcnt lgkmcnt(0)")
    A(f"  v_readfirstlane_b32 s{S_F}, v{V_FREE}"); A("  s_branch LL_chk")
    A("LL_ok:")
    if ad:
        if common:
            if common == 2:
                A("  s_not_b32 s34, s31"); A(f"  s_cmp_eq_u32 s31, 0"); A(f"  s_cselect_b32 s31, s{S_T0}, s34")
            else:
                A(f"  s_cmp_eq_u32 s31, 0"); A(f"  s_cselect_b32 s31, s{S_T0}, s31")
            A(f"  s_sub_u32 s{S_MODE}, s{S_TN}, s31"); A(f"  s_sub_u32 s{S_MODE}, s{S_MODE}, s30")
            A(f"  s_add_u32 s30, s30, {tau}")
        else:
            A(f"  s_sub_u32 s{S_MODE}, s{S_TN}, s{S_T0}")
            A(f"  s_add_u32 s{S_T0}, s{S_T0}, {tau}")
        if len(th) == 1:
            A(f"  s_cmp_gt_i32 s{S_MODE}, {th[0]}"); A(f"  s_cselect_b32 s{S_MODE}, 1, 0")
        else:
            A("  s_mov_b32 s29, 0")
            for t in th:
                A(f"  s_cmp_gt_i32 s{S_MODE}, {t}"); A("  s_addc_u32 s29, s29, 0")
            A(f"  s_mov_b32 s{S_MODE}, s29")
        A(f"  s_cmp_lt_u32 s{S_IT}, {skip}"); A(f"  s_cselect_b32 s{S_MODE}, {init}, s{S_MODE}")
        A(f"  s_add_u32 s{S_LC}, s{S_LC}, s{S_MODE}")
    else:
        A(f"  s_mov_b32 s{S_MODE}, 0")
    if lastmode is not None:
        A(f"  s_cmp_ge_u32 s{S_IT}, {lastmode[0]}"); A(f"  s_cselect_b32 s{S_MODE}, {lastmode[1]}, s{S_MODE}")
    for k in range(1, len(Ws)):
        A(f"  s_cmp_eq_u32 s{S_MODE}, {k}"); A(f"  s_cbranch_scc1 LL_b{k}")
    for k in range(len(Ws)):
        A(f"LL_b{k}:")
        L.extend(lbody(Ws[k]))
        if k < len(Ws) - 1: A("  s_branch LL_next")
    A("LL_next:")
    A(f"  s_add_u32 s{S_IT}, s{S_IT}, 1"); A(f"  s_cmp_lg_u32 s{S_IT}, 32"); A("  s_cbranch_scc1 LL_loop")
    A("  s_waitcnt vmcnt(4)"); A(f"  v_add_u32 v{V_FULL}, 3, v{V_BASE}"); A(f"  ds_write_b32 v{V_FL}, v{V_FULL}")
    A("  s_waitcnt vmcnt(0)"); A(f"  v_add_u32 v{V_FULL}, 4, v{V_BASE}"); A(f"  ds_write_b32 v{V_FL}, v{V_FULL}")
    if ts:
        A(f"  v_mov_b32 v{V_FULL}, s{S_LC}"); A(f"  ds_write_b32 v{V_FL}, v{V_FULL} offset:12")
    A("  s_waitcnt lgkmcnt(0)")
    A("  s_barrier")
    A("  s_endpgm")
    A("L_consumer:")
    V_KR = 4
    V_VL = 8; V_FL = 9; V_P = 10; V_FREE = 11
    CBV = 13; PA, PB = 14, 15
    Wf = 16; ONES = 32; D1A, D1B = 36, 40; X = 44; A2 = 48; B0, B1 = 52, 56; PHQ = 60
    ACC = 64; ZACC = 96; ACCA = 100
    KF0 = 136; KF1 = 152; VR0 = 168
    QF = 200; DQ = 216
    nv = 220
    S_C1 = 44; S_LO = 45; S_HI = 46; S_IT = 47; S_NEED = 48; S_P = 49
    if cprio: A(f"  s_setprio {cprio}")
    A(f"  s_lshl_b32 s37, s2, 12")
    A("  s_mov_b32 s26, 0x1000"); A("  s_mov_b32 s27, 0x20000")
    A("  s_mov_b32 s30, 0x1000"); A("  s_mov_b32 s31, 0x20000")
    A(f"  v_lshlrev_b32 v{V_P}, 8, v{V_TMP}")
    A(f"  v_lshl_add_u32 v{V_P}, v{V_T2}, 4, v{V_P}")
    A("  s_waitcnt lgkmcnt(0)")
    A("  s_mov_b32 s28, s10"); A("  s_mov_b32 s29, s11")
    A("  s_add_u32 s24, s4, s37"); A("  s_addc_u32 s25, s5, 0")
    for t in range(4): A(f"  buffer_load_dwordx4 {vr(Wf+4*t)}, v{V_P}, s[28:31], 0 offen offset:{64*t}")
    for t in range(4): A(f"  buffer_load_dwordx4 {vr(QF+4*t)}, v{V_P}, s[24:27], 0 offen offset:{64*t}")
    A(f"  v_and_b32 v{PA}, 3, v{V_TMP}"); A(f"  v_lshlrev_b32 v{PA}, 10, v{PA}"); A(f"  v_lshrrev_b32 v{PB}, 2, v{V_TMP}")
    A(f"  v_lshl_add_u32 v{PA}, v{PB}, 8, v{PA}"); A(f"  v_add_u32 v{PA}, s51, v{PA}"); A(f"  v_xor_b32 v{PB}, v{V_T2}, v{V_TMP}")
    for t in range(4):
        A(f"  v_xor_b32 v{X}, {4*t}, v{PB}"); A(f"  v_lshl_add_u32 v{V_KR+t}, v{X}, 4, v{PA}")
    A(f"  v_add_u32 v{V_VL}, s51, v{V_VOFF}")
    A(f"  v_mov_b32 v{V_FL}, s52")
    A(f"  v_mov_b32 v{V_FREE}, 0")
    A(f"  s_mov_b32 s{S_C1}, {hex(f2u(C1))}"); A(f"  s_mov_b32 s{S_LO}, 0x05040100"); A(f"  s_mov_b32 s{S_HI}, 0x07060302")
    A(f"  v_mov_b32 v{CBV}, {hex(f2u(CB))}")
    for r in range(4): A(f"  v_mov_b32 v{ONES+r}, 0x3f803f80")
    A("  s_add_u32 s32, s12, s37"); A("  s_addc_u32 s33, s13, 0"); A("  s_mov_b32 s34, 0x1000"); A("  s_mov_b32 s35, 0x20000")
    for r in range(36): A(f"  v_mov_b32 v{ACC+r}, 0")
    A(f"  s_mov_b32 s{S_NEED}, 4"); A(f"  s_mov_b32 s{S_P}, 0")
    if common == 1:
        A("  s_cmp_lg_u32 s50, 0"); A("  s_cbranch_scc1 LC_nocm")
        A("  s_load_dwordx2 s[16:17], s[0:1], 40")
        A("  s_memrealtime s[18:19]")
        A("  s_waitcnt lgkmcnt(0)")
        A("  s_not_b32 s18, s18"); A("  s_mov_b32 s19, s18")
        A("  s_atomic_umax s19, s[16:17], 0 glc")
        A("LC_nocm:")
    A("  s_barrier")
    if common == 1:
        A("  s_cmp_lg_u32 s50, 0"); A("  s_cbranch_scc1 LC_nocm2")
        A("  s_waitcnt lgkmcnt(0)")
        A("  s_max_u32 s19, s19, s18"); A("  s_not_b32 s19, s19")
        A(f"  v_and_b32 v{X}, 3, v{V_LANE}"); A(f"  v_lshlrev_b32 v{X}, 4, v{X}"); A(f"  v_add_u32 v{X}, {FLAGS + 12}, v{X}")
        A(f"  v_mov_b32 v{X+1}, s19"); A(f"  ds_write_b32 v{X}, v{X+1}")
        A("LC_nocm2:")
    A("  s_waitcnt vmcnt(0)")
    for t in range(4):
        c = "0" if t == 0 else vr(DQ)
        A(f"  v_mfma_f32_16x16x32_bf16 {vr(DQ)}, {vr(Wf+4*t)}, {vr(QF+4*t)}, {c}")
        for k in range(4):
            pp = PA if k % 2 == 0 else PB
            cc = "0" if (t == 0 and k < 2) else f"v{pp}"
            A(f"  v_dot2_f32_bf16 v{pp}, v{QF+4*t+k}, v{QF+4*t+k}, {cc}")
    A(f"  v_add_f32 v{PA}, v{PA}, v{PB}"); A(f"  v_mfma_f32_16x16x4_f32 {vr(DQ)}, v{CBV}, v{PA}, {vr(DQ)}")
    for r in range(4): A(f"  v_fma_f32 v{PHQ+r}, v{DQ+r}, s{S_C1}, -2.0")
    for r in range(4): A(f"  v_exp_f32 v{PHQ+r}, v{PHQ+r}")
    for r in range(4): A(f"  v_add_f32 v{PHQ+r}, 0x358637bd, v{PHQ+r}")
    stamp(1)
    def poll(tag, inc):
        o = [f"  s_cmp_ge_u32 s{S_P}, s{S_NEED}", f"  s_cbranch_scc1 LC_ok{tag}", f"LC_poll{tag}:"]
        if sleep: o.append(f"  s_sleep {sleep}")
        o += [f"  ds_read_b32 v{V_P}, v{V_FL}", "  s_waitcnt lgkmcnt(0)", f"  v_readfirstlane_b32 s{S_P}, v{V_P}",
              f"  s_cmp_ge_u32 s{S_P}, s{S_NEED}", f"  s_cbranch_scc0 LC_poll{tag}", f"LC_ok{tag}:", f"  s_add_u32 s{S_NEED}, s{S_NEED}, {inc}"]
        return o
    def ktile(KF, Dr):
        o = []
        for t in range(4):
            c = "0" if t == 0 else vr(Dr)
            o.append(f"  v_mfma_f32_16x16x32_bf16 {vr(Dr)}, {vr(KF+4*t)}, {vr(Wf+4*t)}, {c}")
            for k in range(4):
                p = PA if k % 2 == 0 else PB
                cc = "0" if (t == 0 and k < 2) else f"v{p}"
                o.append(f"  v_dot2_f32_bf16 v{p}, v{KF+4*t+k}, v{KF+4*t+k}, {cc}")
        o += [f"  v_add_f32 v{PA}, v{PA}, v{PB}", f"  v_mfma_f32_16x16x4_f32 {vr(Dr)}, v{PA}, v{CBV}, {vr(Dr)}"]
        return o
    def PH(T):
        Dr = D1A if T == 0 else D1B
        o = [f"  v_fma_f32 v{X+r}, v{Dr+r}, s{S_C1}, -2.0" for r in range(4)]
        o += [f"  v_exp_f32 v{X+r}, v{X+r}" for r in range(4)]
        o += [f"  v_add_f32 v{X+r}, 0x358637bd, v{X+r}" for r in range(4)]
        o += [f"  v_cvt_pk_bf16_f32 v{A2+2*T}, v{X}, v{X+1}", f"  v_cvt_pk_bf16_f32 v{A2+2*T+1}, v{X+2}, v{X+3}"]
        return o
    def VR(T, j): return VR0 + 16*T + 4*j
    def perms(e, B):
        sel = f"s{S_LO}" if e % 2 == 0 else f"s{S_HI}"
        return [f"  v_perm_b32 v{B+p}, v{VR(p >> 1, 2*(p&1)+1)+e//2}, v{VR(p >> 1, 2*(p&1))+e//2}, {sel}" for p in range(4)]
    def cpair(par):
        base = par * 4 * 4096
        o = poll(f"a{par}", 1)
        for t in range(4): o.append(f"  ds_read_b128 {vr(KF0+4*t)}, v{V_KR+t} offset:{base}")
        for t in range(4): o.append(f"  ds_read_b128 {vr(KF1+4*t)}, v{V_KR+t} offset:{base + 8192}")
        for j in range(4): o.append(f"  ds_read_b128 {vr(VR(0, j))}, v{V_VL} offset:{base + 4096 + 1024*j}")
        o.append("  s_waitcnt lgkmcnt(8)")
        o += ktile(KF0, D1A)
        o.append("  s_waitcnt lgkmcnt(4)")
        o += ktile(KF1, D1B)
        o += PH(0); o += PH(1)
        o += poll(f"b{par}", 3)
        for j in range(4): o.append(f"  ds_read_b128 {vr(VR(1, j))}, v{V_VL} offset:{base + 12288 + 1024*j}")
        o.append(f"  v_add_u32 v{V_FREE}, 1, v{V_FREE}")
        o.append("  s_waitcnt lgkmcnt(0)")
        o.append(f"  ds_write_b32 v{V_FL}, v{V_FREE} offset:4")
        o += perms(0, B0); o += perms(1, B1)
        for e in range(8):
            B = B0 if e % 2 == 0 else B1
            o.append(f"  v_mfma_f32_16x16x32_bf16 {vr(ACC+4*e)}, {vr(A2)}, {vr(B)}, {vr(ACC+4*e)}")
            if e + 2 < 8: o += perms(e+2, B)
        o.append(f"  v_mfma_f32_16x16x32_bf16 {vr(ZACC)}, {vr(A2)}, {vr(ONES)}, {vr(ZACC)}")
        return o
    A(f"  s_mov_b32 s{S_IT}, 0")
    A("LC_loop:")
    KEEP, ZK, OUTA_, DEN_, STA, STD, RBm = 100, 108, 112, 120, 124, 125, 136
    sf = (" " + stflag) if stflag else ""
    def den_code(Z, DENr):
        o = [f"  v_mul_f32 v{X}, v{PHQ}, v{Z}"] + [f"  v_fma_f32 v{X}, v{PHQ+r}, v{Z+r}, v{X}" for r in range(1, 4)]
        return o + [f"  v_mov_b32 v{X+1}, 1.0", f"  v_mfma_f32_16x16x4_f32 {vr(DENr)}, v{X}, v{X+1}, 0"]
    def staddr(head):
        return [f"  v_lshrrev_b32 v{STA}, 5, v{V_LANE}", f"  v_cmp_eq_u32 vcc, {head}, v{STA}",
                f"  v_lshrrev_b32 v{STA}, 4, v{V_LANE}", f"  v_lshlrev_b32 v{STA}, 10, v{STA}",
                f"  v_and_b32 v{STD}, 15, v{V_LANE}", f"  v_lshl_add_u32 v{STA}, v{STD}, 4, v{STA}",
                f"  s_lshl_b32 s56, s50, 2", f"  v_add_u32 v{STA}, s56, v{STA}"]
    if not fin:
        A(f"  s_cmp_lg_u32 s{S_IT}, 8"); A("  s_cbranch_scc1 LC_nosw"); A("  s_nop 7")
        for r in range(36): A(f"  v_mov_b32 v{ACCA+r}, v{ACC+r}")
        for r in range(36): A(f"  v_mov_b32 v{ACC+r}, 0")
        A("LC_nosw:")
    else:
        A(f"  s_cmp_lg_u32 s{S_IT}, 8"); A("  s_cbranch_scc1 LC_nosw"); A("  s_nop 7")
        A(f"  s_mul_i32 s53, s50, 7168"); A(f"  s_add_u32 s53, s53, {SP}")
        A(f"  v_add_u32 v{STA}, s53, v{V_VOFF}")
        A(f"  ds_write_b128 v{STA}, {vr(ZACC)} offset:6144")
        for j in range(4):
            A(f"  s_cmp_eq_u32 s50, {j}"); A(f"  s_cbranch_scc1 LC_keep{j}")
            A(f"  s_sub_u32 s54, {j - 1 + 4}, s50"); A("  s_and_b32 s54, s54, 3"); A("  s_lshl_b32 s54, s54, 11")
            A(f"  v_add_u32 v{STD}, s54, v{STA}")
            A(f"  ds_write_b128 v{STD}, {vr(ACC+8*j)}"); A(f"  ds_write_b128 v{STD}, {vr(ACC+8*j+4)} offset:1024")
            A(f"  s_branch LC_kn{j}")
            A(f"LC_keep{j}:")
            for r in range(8): A(f"  v_mov_b32 v{KEEP+r}, v{ACC+8*j+r}")
            A(f"LC_kn{j}:")
        for r in range(4): A(f"  v_mov_b32 v{ZK+r}, v{ZACC+r}")
        A(f"  v_mov_b32 v{STA}, {FLAGS}"); A(f"  v_mov_b32 v{STD}, 1"); A(f"  ds_add_u32 v{STA}, v{STD} offset:8")
        A("  s_waitcnt lgkmcnt(0)")
        for r in range(36): A(f"  v_mov_b32 v{ACC+r}, 0")
        A("LC_nosw:")
        A(f"  s_cmp_lg_u32 s{S_IT}, {finit}"); A("  s_cbranch_scc1 LC_nofin")
        A(f"  v_mov_b32 v{STA}, {FLAGS}")
        A("LC_pollA:")
        A(f"  ds_read_b32 v{STD}, v{STA} offset:8"); A("  s_waitcnt lgkmcnt(0)"); A(f"  v_readfirstlane_b32 s53, v{STD}")
        A("  s_cmp_ge_u32 s53, 256"); A("  s_cbranch_scc0 LC_pollA")
        for i in range(3):
            A(f"  s_add_u32 s53, s50, {1 + i}"); A("  s_and_b32 s53, s53, 3"); A("  s_mul_i32 s53, s53, 7168"); A(f"  s_add_u32 s53, s53, {SP}")
            A(f"  v_add_u32 v{STA+1+i}, s53, v{V_VOFF}")
        for k in (2, 0, 1):
            for i in range(3):
                off = 6144 if k == 2 else (2 - i)*2048 + 1024*k
                A(f"  ds_read_b128 {vr(RBm + 12*k + 4*i)}, v{STA+1+i} offset:{off}")
        A("  s_waitcnt lgkmcnt(0)")
        for k in (2, 0, 1):
            dst = ZK if k == 2 else KEEP + 4*k
            b = RBm + 12*k
            for r in range(4): A(f"  v_add_f32 v{b+r}, v{b+r}, v{b+4+r}")
            for r in range(4): A(f"  v_add_f32 v{dst+r}, v{dst+r}, v{b+8+r}")
            for r in range(4): A(f"  v_add_f32 v{dst+r}, v{dst+r}, v{b+r}")
        L.extend(den_code(ZK, DEN_))
        for r in range(4):
            for k in range(2):
                c = "0" if r == 0 else vr(OUTA_+4*k)
                A(f"  v_mfma_f32_16x16x4_f32 {vr(OUTA_+4*k)}, v{PHQ+r}, v{KEEP+4*k+r}, {c}")
        L.extend(staddr(0))
        for r in range(4): A(f"  v_add_f32 v{DEN_+r}, 0x358637bd, v{DEN_+r}")
        for r in range(4): A(f"  v_rcp_f32 v{DEN_+r}, v{DEN_+r}")
        for r in range(4):
            A(f"  v_mul_f32 v{OUTA_+r}, v{OUTA_+r}, v{DEN_+r}"); A(f"  v_mul_f32 v{OUTA_+4+r}, v{OUTA_+4+r}, v{DEN_+r}")
        for r in range(4): A(f"  v_cvt_pk_bf16_f32 v{STD+r}, v{OUTA_+r}, v{OUTA_+4+r}")
        A("  s_and_saveexec_b64 s[58:59], vcc")
        for r in range(4): A(f"  buffer_store_dword v{STD+r}, v{STA}, s[32:35], 0 offen offset:{256*r}{sf}")
        A("  s_mov_b64 exec, s[58:59]")
        A("LC_nofin:")
    L.extend(cpair(0)); L.extend(cpair(1))
    A(f"  s_add_u32 s{S_IT}, s{S_IT}, 1"); A(f"  s_cmp_lg_u32 s{S_IT}, 16"); A("  s_cbranch_scc1 LC_loop")
    stamp(3)
    if not fin:
        for e in range(9): A(f"  ds_write_b128 v{V_VL}, {vr(ACCA+4*e)} offset:{1024*e}")
        A("  s_nop 7")
        for e in range(9): A(f"  ds_write_b128 v{V_VL}, {vr(ACC+4*e)} offset:{9216 + 1024*e}")
        A("  s_lshr_b32 s53, s50, 1"); A("  s_and_b32 s54, s50, 1")
        A("  s_mul_i32 s55, s53, 9216")
        A(f"  v_add_u32 v{V_T2}, s55, v{V_VOFF}")
        A("  s_lshl_b32 s56, s54, 12")
        A(f"  v_add_u32 v{V_TMP}, s56, v{V_T2}")
        A(f"  v_add_u32 v{PA}, 0x10000, v{V_TMP}")
        A(f"  v_add_u32 v{PB}, 0x10000, v{V_T2}")
        A("  s_waitcnt lgkmcnt(0)")
        A("  s_barrier")
        stamp(4)
        RB = 136
        OUTA = ACC; DEN = ACC + 16; Z = RB + 64
        for k in [4, 0, 1, 2, 3]:
            for src in range(4):
                off = (src & 1) * 32768
                if k == 4: A(f"  ds_read_b128 {vr(RB + 16*k + 4*src)}, v{V_T2 if src < 2 else PB} offset:{off + 8192}")
                else: A(f"  ds_read_b128 {vr(RB + 16*k + 4*src)}, v{V_TMP if src < 2 else PA} offset:{off + 1024*k}")
        def sumgrp(k, gidx):
            b0 = RB + 16*k
            if gidx == 0: return [f"  v_add_f32 v{b0+r}, v{b0+r}, v{b0+4+r}" for r in range(4)]
            if gidx == 1: return [f"  v_add_f32 v{b0+8+r}, v{b0+8+r}, v{b0+12+r}" for r in range(4)]
            return [f"  v_add_f32 v{b0+r}, v{b0+r}, v{b0+8+r}" for r in range(4)]
        A("  s_waitcnt lgkmcnt(15)")
        for g_ in range(3): L.extend(sumgrp(4, g_))
        A(f"  v_mul_f32 v{X}, v{PHQ}, v{Z}")
        for r in range(1, 4): A(f"  v_fma_f32 v{X}, v{PHQ+r}, v{Z+r}, v{X}")
        A(f"  v_mov_b32 v{X+1}, 1.0")
        A("  s_waitcnt lgkmcnt(12)")
        L.extend(sumgrp(0, 0))
        A(f"  v_mfma_f32_16x16x4_f32 {vr(DEN)}, v{X}, v{X+1}, 0")
        L.extend(sumgrp(0, 1)); L.extend(sumgrp(0, 2))
        for k in range(4):
            b0 = RB + 16*k
            for r in range(4):
                c = "0" if r == 0 else vr(OUTA+4*k)
                A(f"  v_mfma_f32_16x16x4_f32 {vr(OUTA+4*k)}, v{PHQ+r}, v{b0+r}, {c}")
                if k < 3 and r < 3:
                    if r == 0: A(f"  s_waitcnt lgkmcnt({8 - 4*k})")
                    L.extend(sumgrp(k+1, r))
                if k == 3 and r == 0:
                    for rr in range(4): A(f"  v_add_f32 v{DEN+rr}, 0x358637bd, v{DEN+rr}")
                if k == 3 and r == 1:
                    for rr in range(4): A(f"  v_rcp_f32 v{DEN+rr}, v{DEN+rr}")
                if k == 3 and r == 2:
                    A(f"  v_lshrrev_b32 v{V_TMP}, 5, v{V_LANE}")
                    A(f"  v_cmp_eq_u32 vcc, s53, v{V_TMP}")
                    A(f"  v_lshrrev_b32 v{V_TMP}, 4, v{V_LANE}")
                    A(f"  v_lshlrev_b32 v{V_TMP}, 10, v{V_TMP}")
                    A(f"  v_and_b32 v{V_T2}, 15, v{V_LANE}")
                    A(f"  v_lshl_add_u32 v{V_TMP}, v{V_T2}, 4, v{V_TMP}")
                    A(f"  s_lshl_b32 s56, s54, 3")
                    A(f"  v_add_u32 v{V_TMP}, s56, v{V_TMP}")
        stamp(5)
        OUT = B0
        for r in range(4):
            for k in range(4): A(f"  v_mul_f32 v{OUTA+4*k+r}, v{OUTA+4*k+r}, v{DEN+r}")
            A(f"  v_cvt_pk_bf16_f32 v{OUT+2*r}, v{OUTA+r}, v{OUTA+4+r}")
            A(f"  v_cvt_pk_bf16_f32 v{OUT+2*r+1}, v{OUTA+8+r}, v{OUTA+12+r}")
        A(f"  s_and_saveexec_b64 s[58:59], vcc")
        sf = (" " + stflag) if stflag else ""
        for r in range(4):
            A(f"  buffer_store_dwordx2 {vr(OUT+2*r, 2)}, v{V_TMP}, s[32:35], 0 offen offset:{256*r}{sf}")
        A(f"  s_mov_b64 exec, s[58:59]")
    else:
        for e in range(9): A(f"  ds_write_b128 v{V_VL}, {vr(ACC+4*e)} offset:{1024*e}")
        A(f"  s_lshl_b32 s56, s50, 11")
        A(f"  v_add_u32 v{V_TMP}, s56, v{V_VOFF}")
        A(f"  v_add_u32 v{PA}, 0x10000, v{V_TMP}")
        A(f"  v_add_u32 v{PB}, 0x10000, v{V_VOFF}")
        L.extend(staddr(1))
        A("  s_waitcnt lgkmcnt(0)")
        A("  s_barrier")
        stamp(4)
        RB = 136; OUTB = ACC
        for k in (2, 0, 1):
            for w in range(4):
                off = (w & 1) * 32768
                if k == 2: A(f"  ds_read_b128 {vr(RB + 16*k + 4*w)}, v{V_VOFF if w < 2 else PB} offset:{off + 8192}")
                else: A(f"  ds_read_b128 {vr(RB + 16*k + 4*w)}, v{V_TMP if w < 2 else PA} offset:{off + 1024*k}")
        def sums(k):
            b0 = RB + 16*k
            return ([f"  v_add_f32 v{b0+r}, v{b0+r}, v{b0+4+r}" for r in range(4)] + [f"  v_add_f32 v{b0+8+r}, v{b0+8+r}, v{b0+12+r}" for r in range(4)]
                    + [f"  v_add_f32 v{b0+r}, v{b0+r}, v{b0+8+r}" for r in range(4)])
        A("  s_waitcnt lgkmcnt(8)")
        L.extend(sums(2))
        dn = den_code(RB + 32, DEN_)
        L.extend(dn[:-1])
        A("  s_waitcnt lgkmcnt(4)")
        s0 = sums(0)
        L.extend(s0[:4]); A(dn[-1]); L.extend(s0[4:])
        A("  s_waitcnt lgkmcnt(0)")
        s1 = sums(1)
        for r in range(4):
            A(f"  v_mfma_f32_16x16x4_f32 {vr(OUTB)}, v{PHQ+r}, v{RB+r}, {'0' if r == 0 else vr(OUTB)}")
            if r < 3: L.extend(s1[4*r:4*r+4])
        for r in range(4):
            A(f"  v_mfma_f32_16x16x4_f32 {vr(OUTB+4)}, v{PHQ+r}, v{RB+16+r}, {'0' if r == 0 else vr(OUTB+4)}")
            if r == 0:
                for rr in range(4): A(f"  v_add_f32 v{DEN_+rr}, 0x358637bd, v{DEN_+rr}")
            if r == 1:
                for rr in range(4): A(f"  v_rcp_f32 v{DEN_+rr}, v{DEN_+rr}")
        stamp(5)
        for r in range(4): A(f"  v_mul_f32 v{OUTB+r}, v{OUTB+r}, v{DEN_+r}")
        for r in range(4): A(f"  v_mul_f32 v{OUTB+4+r}, v{OUTB+4+r}, v{DEN_+r}")
        for r in range(4): A(f"  v_cvt_pk_bf16_f32 v{STD+r}, v{OUTB+r}, v{OUTB+4+r}")
        A("  s_and_saveexec_b64 s[58:59], vcc")
        for r in range(4): A(f"  buffer_store_dword v{STD+r}, v{STA}, s[32:35], 0 offen offset:{256*r}{sf}")
        A("  s_mov_b64 exec, s[58:59]")
    if ts:
        stamp(6)
        A("  s_waitcnt vmcnt(0)")
        A("  s_memrealtime s[62:63]")
        A("  s_getreg_b32 s64, hwreg(HW_REG_XCC_ID)")
        A("  s_waitcnt lgkmcnt(0)")
        A("  s_cmp_lg_u32 s3, 4"); A("  s_cbranch_scc1 L_end")
        A("  v_mov_b32 v10, s60"); A("  v_mov_b32 v11, s61"); A("  v_mov_b32 v12, s62"); A("  v_mov_b32 v13, s63")
        A("  v_mov_b32 v14, s64"); A(f"  v_mov_b32 v9, {FLAGS}"); A("  ds_read_b32 v15, v9 offset:12"); A("  s_waitcnt lgkmcnt(0)")
        A("  s_lshl_b32 s3, s2, 5"); A("  v_mov_b32 v9, s3")
        A("  v_cmp_eq_u32 vcc, 0, v0"); A("  s_and_saveexec_b64 s[46:47], vcc"); A("  s_cbranch_execz L_end")
        A("  global_store_dwordx4 v9, v[10:13], s[14:15]")
        A("  global_store_dwordx2 v9, v[14:15], s[14:15] offset:16")
        if ts == 2:
            A("  s_lshl_b32 s3, s2, 6"); A("  s_add_u32 s3, s3, 0x100000"); A("  v_mov_b32 v9, s3")
            for k in range(7):
                A(f"  v_mov_b32 v10, s{66+2*k}"); A(f"  v_mov_b32 v11, s{67+2*k}")
                A(f"  global_store_dwordx2 v9, v[10:11], s[14:15] offset:{8*k}")
    A("L_end:\n  s_endpgm")
    A(f""".section .rodata,"a"
.p2align 6
.amdhsa_kernel {KNAME}
  .amdhsa_next_free_vgpr 256
  .amdhsa_next_free_sgpr 96
  .amdhsa_accum_offset 256
  .amdhsa_group_segment_fixed_size 0
  .amdhsa_kernarg_size 56
  .amdhsa_user_sgpr_count 2
  .amdhsa_user_sgpr_kernarg_segment_ptr 1
  .amdhsa_system_sgpr_workgroup_id_x 1
.end_amdhsa_kernel""")
    lines = "\n".join(L).split("\n")
    lines = haz.fix(lines)
    i0 = lines.index("LC_loop:"); i1 = [k for k, l in enumerate(lines) if "s_cbranch_scc1 LC_loop" in l][0]
    body = lines[i0:i1+1]
    a = [k for k, l in enumerate(body) if "s_cbranch_scc1 LC_nosw" in l][0]; b = body.index("LC_nosw:")
    short = body[:a+1] + body[b:]
    if fin:
        a = [k for k, l in enumerate(short) if "s_cbranch_scc1 LC_nofin" in l][0]; b = short.index("LC_nofin:")
        only8 = body[:[k for k, l in enumerate(body) if "s_cbranch_scc1 LC_nofin" in l][0]+1] + body[body.index("LC_nofin:"):]
        onlyf = list(short)
        short = short[:a+1] + short[b:]
        for seq in (short + only8 + onlyf, short + onlyf + short, only8 + short):
            bad = haz.check(seq); assert not bad, bad[:3]
    def nopoll(seq):
        out = []; skip = False
        for l in seq:
            if l.startswith("LC_poll"): skip = True
            if l.startswith("LC_ok"): skip = False
            if not skip: out.append(l)
        return out
    for seq in (body + body, short + short, body + short, short + body, short + lines[i1+1:]):
        for f in (lambda x: x, nopoll):
            bad = haz.check(f(seq))
            assert not bad, bad[:3]
    open(path, "w").write("\n".join(lines) + "\n")
    return len(lines)

if __name__ == "__main__":
    name = sys.argv[1]
    kw = eval("dict(" + (sys.argv[2] if len(sys.argv) > 2 else "") + ")")
    print(name, gen6(name, **kw), "lines")
```
